```python
import torch

def _softmax(x, axis=-1):
    return torch.softmax(x, dim=axis)
def _gelu(x):
    return torch.nn.functional.gelu(x, approximate="tanh")
def _silu(x):
    return torch.nn.functional.silu(x)
def _sigmoid(x):
    return torch.sigmoid(x)
def _layernorm(x, axis=-1, eps=1e-5):
    m = x.mean(dim=axis, keepdim=True)
    v = x.var(dim=axis, keepdim=True, unbiased=False)
    return (x - m) / torch.sqrt(v + eps)
def _scatter_add(tgt, idx, src, axis=0):
    return tgt.clone().index_add_(axis, idx, src)
def _segment_sum(src, seg, n):
    out = torch.zeros((n,) + src.shape[1:], dtype=src.dtype)
    return out.index_add_(0, seg, src)
def _pad(x, pw):
    flat = tuple(v for pair in reversed(pw) for v in pair)
    return torch.nn.functional.pad(x, flat)

kernel_name = 'recurrent_scan__ssm_conv_s4d__dense_activation_silu__prompt'

def setup_inputs():

    _w = (lambda a: (lambda t: t.to(torch.bfloat16) if t.is_floating_point() else t)(torch.as_tensor(a)))
    def _A_setup():
        Bsz, L, D, N = 1, 2048, 512, 128
        return {
            "u": _w((lambda *s: torch.randn(*s, dtype=torch.bfloat16) * 0.05)(Bsz, L, D)),
            "log_A_real": _w((lambda *s: torch.randn(*s, dtype=torch.bfloat16) * 6.4)(D, N) * 0.5),
            "A_imag": _w((lambda *s: torch.randn(*s, dtype=torch.bfloat16) * 0.2)(D, N) * 3.14),
            "C_real": _w((lambda *s: torch.randn(*s, dtype=torch.bfloat16) * 0.4)(D, N) / N ** 0.5),
            "C_imag": _w((lambda *s: torch.randn(*s, dtype=torch.bfloat16) * 0.4)(D, N) / N ** 0.5),
            "log_dt": _w((lambda *s: torch.randn(*s, dtype=torch.bfloat16) * 0.2)(D) * 0.5 - 4.0),
            "D_skip": _w((lambda *s: torch.randn(*s, dtype=torch.bfloat16) * 0.2)(D)),
        }
    _A_in = _A_setup()

    def _B_setup():
        B, S, D, F = 1, 2048, 512, 1792
        return {
            "x": _w((lambda *s: torch.randn(*s, dtype=torch.bfloat16) * 0.05)(B, S, D)),
            "w1": _w((lambda *s: torch.randn(*s, dtype=torch.bfloat16) * 0.8)(D, F) * (D ** -0.5)),
            "w2": _w((lambda *s: torch.randn(*s, dtype=torch.bfloat16) * 0.1)(F, D) * (F ** -0.5)),
        }
    _B_in = _B_setup()

    return {
        "A_u": _A_in["u"],
        "A_log_A_real": _A_in["log_A_real"],
        "A_A_imag": _A_in["A_imag"],
        "A_C_real": _A_in["C_real"],
        "A_C_imag": _A_in["C_imag"],
        "A_log_dt": _A_in["log_dt"],
        "A_D_skip": _A_in["D_skip"],
        "B_x": _B_in["x"],
        "B_w1": _B_in["w1"],
        "B_w2": _B_in["w2"],
    }

def reference(A_u, A_log_A_real, A_A_imag, A_C_real, A_C_imag, A_log_dt, A_D_skip, B_x, B_w1, B_w2):
    def _A_ref(u, log_A_real, A_imag, C_real, C_imag, log_dt, D_skip):
        L = u.shape[1]
        dt = torch.exp(log_dt)
        A = -torch.exp(log_A_real) + 1j * A_imag
        C = (C_real + 1j * C_imag) * dt[:, None]
        pos = (lambda x, dt: x.to(dt))(torch.arange(L), log_dt.dtype)
        P = torch.exp((A * dt[:, None])[:, :, None] * pos[None, None, :])
        K = 2.0 * torch.einsum("dn,dnl->dl", C, P).real
        L2 = 2 * L
        u_t = (lambda x, *d: x.permute(*d))(u, 0, 2, 1)
        Kf = (lambda x, *a, **k: torch.fft.rfft(x.float(), *a, **k))(K, L2)
        Uf = (lambda x, *a, **k: torch.fft.rfft(x.float(), *a, **k))(u_t, L2)
        y = (lambda x, *a, **k: torch.fft.irfft(x, *a, **k).to(torch.bfloat16))(Uf * Kf[None, :, :], L2)[:, :, :L]
        y = (lambda x, *d: x.permute(*d))(y, 0, 2, 1)
        return y + u * D_skip[None, None, :]

    def _B_ref(x, w1, w2):
        h = torch.einsum("bsd,df->bsf", x, w1)
        h = _silu(h)
        out = torch.einsum("bsf,fd->bsd", h, w2)
        return out

    x = A_u
    xn = _layernorm(x, axis=-1)
    s = _A_ref(xn, A_log_A_real, A_A_imag, A_C_real, A_C_imag, A_log_dt, A_D_skip)
    g = _silu(_B_ref(xn, B_w1, B_w2))
    return x + s * g
```

```python
import re

REG_RE = re.compile(r"(?<![\w.])([vas])(?:(\d+)|\[(\d+):(\d+)\])(?![\w])")
TRANS = ("v_exp_f32", "v_log_f32", "v_rcp_f32", "v_rsq_f32", "v_sqrt_f32", "v_sin_f32", "v_cos_f32")


def regs_of(tok):
    out = set()
    for m in REG_RE.finditer(tok):
        k = m.group(1)
        if m.group(2) is not None:
            out.add((k, int(m.group(2))))
        else:
            for i in range(int(m.group(3)), int(m.group(4)) + 1):
                out.add((k, i))
    if re.search(r"\bvcc\b", tok):
        out.add(("s", 106)); out.add(("s", 107))
    if re.search(r"\bm0\b", tok):
        out.add(("s", 124))
    if re.search(r"\bexec\b", tok):
        out.add(("s", 126)); out.add(("s", 127))
    return out


def split_ops(s):
    ops, depth, cur = [], 0, ""
    for ch in s:
        if ch == "[": depth += 1
        if ch == "]": depth -= 1
        if ch == "," and depth == 0:
            ops.append(cur.strip()); cur = ""
        else:
            cur += ch
    if cur.strip(): ops.append(cur.strip())
    return ops


class Ins:
    __slots__ = ("text", "mn", "cls", "wr", "rd", "rdA", "rdC", "passes", "states", "dpp", "wide_store", "data", "lds_m0")

    def __init__(self, text):
        self.text = text
        t = text.split(";")[0].strip()
        parts = t.split(None, 1)
        mn = parts[0]
        rest = parts[1] if len(parts) > 1 else ""
        self.mn = mn
        ops = split_ops(rest)
        self.wr, self.rd, self.rdA, self.rdC = set(), set(), set(), set()
        self.passes = 0
        self.states = 1
        self.dpp = ("dpp" in mn) or bool(re.search(r"\b(row_|quad_perm|wave_|bank_mask)", rest))
        self.wide_store = False
        self.data = set()
        self.lds_m0 = False
        R = [regs_of(o) for o in ops]
        allr = set().union(*R) if R else set()
        if mn == "s_nop":
            self.cls = "nop"; self.states = int(ops[0], 0) + 1
        elif mn.startswith("v_mfma"):
            self.cls = "mfma"
            self.wr = R[0]; self.rdA = R[1] | R[2]; self.rdC = R[3]; self.rd = self.rdA | self.rdC
            self.passes = 8 if "32x32" in mn else 4
        elif mn.startswith("v_cmp"):
            self.cls = "valu"; self.wr = R[0]; self.rd = set().union(*R[1:])
        elif mn.startswith("v_readfirstlane") or mn.startswith("v_readlane"):
            self.cls = "valu"; self.wr = R[0]; self.rd = set().union(*R[1:])
        elif mn.startswith("v_swap") or mn.startswith("v_permlane"):
            self.cls = "valu"; self.wr = R[0] | R[1]; self.rd = R[0] | R[1]
        elif mn.startswith("v_"):
            self.cls = "valu"; self.wr = set(R[0]); self.rd = set().union(*R[1:]) if len(R) > 1 else set()
            if "_co_" in mn:
                self.wr |= R[1]
            if mn.startswith(("v_fmac", "v_dot2c", "v_pk_fmac")) or self.dpp or "sdwa" in mn:
                self.rd |= R[0]
            if mn.startswith("v_cndmask") and len(ops) == 3:
                self.rd |= regs_of("vcc")
        elif mn.startswith("ds_"):
            self.cls = "ds"
            if mn.startswith(("ds_read", "ds_bpermute", "ds_permute", "ds_swizzle")):
                self.wr = R[0]; self.rd = set().union(*R[1:]) if len(R) > 1 else set()
                if "d16" in mn: self.rd |= R[0]
            else:
                self.rd = allr
            if "addtid" in mn: self.lds_m0 = True
        elif mn.startswith(("global_", "buffer_", "flat_")):
            self.cls = "vmem"
            is_lds = bool(re.search(r"\blds\b", rest)) or "_lds_" in mn
            if "load" in mn and not is_lds:
                self.wr = R[0]; self.rd = set().union(*R[1:])
                if "d16" in mn: self.rd |= R[0]
            elif "atomic" in mn and re.search(r"\bsc0\b", rest):
                self.wr = R[0]; self.rd = allr
            else:
                self.rd = allr
            if is_lds: self.lds_m0 = True
            if "store" in mn and ("x3" in mn or "x4" in mn):
                self.wide_store = True
                self.data = R[1] if mn.startswith(("global_", "flat_")) else R[0]
        elif mn.startswith("s_"):
            self.cls = "salu"
            if mn.startswith(("s_cmp", "s_waitcnt", "s_barrier", "s_branch", "s_cbranch", "s_endpgm", "s_sleep", "s_setprio", "s_bitcmp")):
                self.rd = allr
            else:
                self.wr = set(R[0]) if R else set(); self.rd = set().union(*R[1:]) if len(R) > 1 else set()
                if "saveexec" in mn: self.wr |= regs_of("exec")
        else:
            raise ValueError("unknown instruction: " + text)


T_C = {2: 4, 4: 6, 8: 10, 16: 18}
T_AB = {2: 5, 4: 8, 8: 12, 16: 20}
T_WAR = {2: 1, 4: 3, 8: 7, 16: 15}


def need(p, c):
    n = 0
    vec = lambda s: {r for r in s if r[0] in "va"}
    sg = lambda s: {r for r in s if r[0] == "s"}
    if p.cls == "valu":
        pv, ps = vec(p.wr), sg(p.wr)
        if c.cls == "mfma" and pv & c.rd: n = max(n, 2)
        if p.mn.startswith(TRANS) and pv & (c.rd | c.wr) and c.cls in ("valu", "ds", "vmem"): n = max(n, 1)
        if p.mn.startswith("v_dot") and pv & (c.rd | c.wr) and not (c.mn == p.mn):
            n = max(n, 3)
        if ps:
            if c.cls == "vmem" and ps & c.rd: n = max(n, 5)
            if c.cls == "valu" and ps & c.rd:
                n = max(n, 4 if c.mn.startswith(("v_readlane", "v_writelane")) else 2)
            if c.cls == "salu" and ps & c.rd: n = max(n, 1)
        if c.cls == "valu" and pv & c.rd:
            if c.mn.startswith(("v_readlane", "v_readfirstlane")): n = max(n, 1)
            if c.dpp or c.mn.startswith("v_permlane"): n = max(n, 2)
        if ("sdwa" in p.mn or "op_sel" in p.text) and c.cls == "valu" and pv & (c.rd | c.wr) and not p.mn.startswith("v_pk_"):
            n = max(n, 1)
    if p.cls == "mfma":
        D = p.wr
        if c.cls == "mfma":
            if D & c.rdA: n = max(n, T_AB[p.passes])
            if D & c.rdC:
                if not (c.rdC == D and c.passes == p.passes): n = max(n, T_C[p.passes])
            elif D & c.wr:
                n = max(n, T_C[p.passes])
        elif c.cls in ("valu", "ds", "vmem"):
            if D & (c.rd | c.wr): n = max(n, T_AB[p.passes])
            if c.cls == "valu" and p.rdC & c.wr: n = max(n, T_WAR[p.passes])
            if c.cls in ("ds", "vmem") and p.rdC & c.wr: n = max(n, T_WAR[p.passes])
    if p.cls == "salu" and ("s", 124) in p.wr and c.lds_m0: n = max(n, 1)
    if p.wide_store and p.data & c.wr: n = max(n, 2)
    return n


class Asm:
    def __init__(self):
        self.lines = []
        self.hist = []
        self.vm = []
        self.lg = []
        self.nnop = 0

    def raw(self, s):
        self.lines.append(s)

    def label(self, name, pad=True):
        self.lines.append(name + ":")

    def comment(self, s):
        self.lines.append("    ; " + s)

    def I(self, text, vm=None, lg=None):
        for t in text.split("\n"):
            t = t.strip()
            if not t: continue
            ins = Ins(t)
            dist = 0; req = 0
            for p in reversed(self.hist):
                r = need(p, ins) - dist
                if r > req: req = r
                dist += p.states
                if dist >= 20: break
            while req > 0:
                k = min(req, 16)
                nop = Ins(f"s_nop {k-1}")
                self.lines.append("    " + nop.text); self.hist.append(nop); self.nnop += 1
                req -= k
            self.lines.append("    " + t)
            self.hist.append(ins)
            if len(self.hist) > 40: self.hist = self.hist[-30:]
            if ins.cls == "vmem" and not ins.mn.startswith(("buffer_inv", "buffer_wbl2")): self.vm.append(vm)
            if ins.cls == "ds": self.lg.append(lg)

    def _n_after(self, lst, tag):
        idx = [i for i, t in enumerate(lst) if t == tag or (isinstance(tag, (set, list, tuple)) and not isinstance(t, type(None)) and t in tag)]
        if not idx: return None
        return len(lst) - 1 - idx[-1]

    def wait(self, vm=None, lg=None):
        parts = []
        if vm is not None:
            if vm == "all": n = 0 if self.vm else None
            else: n = self._n_after(self.vm, vm)
            if n is not None:
                n = min(n, 63); parts.append(f"vmcnt({n})"); self.vm = self.vm[len(self.vm) - n:] if n else []
        if lg is not None:
            if lg == "all": n = 0 if self.lg else None
            else: n = self._n_after(self.lg, lg)
            if n is not None:
                n = min(n, 15); parts.append(f"lgkmcnt({n})"); self.lg = self.lg[len(self.lg) - n:] if n else []
        if parts:
            self.I("s_waitcnt " + " ".join(parts))

    def wait_smem(self):
        self.I("s_waitcnt lgkmcnt(0)"); self.lg = []

    def flush_hazards(self, n=16):
        self.I(f"s_nop {n-1}")

    def text(self):
        return "\n".join(self.lines) + "\n"


def vr(b, n=1, k="v"):
    return f"{k}{b}" if n == 1 else f"{k}[{b}:{b+n-1}]"


def ar(b, n=1):
    return vr(b, n, "a")


def sr(b, n=1):
    return vr(b, n, "s")
```

```python
import sys
from asmlib import *

NAME = "recurrent_scan__ssm_conv_s4d__dense_activation_silu__prompt"
WS_H, WS_UT, WS_S = 0, 8 << 20, 10 << 20
WS_BYTES = 12 << 20
LOG2E = 0x3FB8AA3B
INV2PI = 0x3E22F983


def srd(a, d, base, nbytes):
    a.I(f"s_mov_b32 s{d}, s{base}\ns_and_b32 s{d+1}, s{base+1}, 0xffff\ns_mov_b32 s{d+2}, {nbytes:#x}\ns_mov_b32 s{d+3}, 0x20000")


def bf16r(a, d, s):
    a.I(f"v_cvt_pk_bf16_f32 v{d}, v{s}, v{s}\nv_and_b32 v{d}, 0xffff0000, v{d}")


def header(a, kname):
    a.raw(f".text\n.globl {kname}\n.p2align 8\n.type {kname},@function\n{kname}:")
    a.hist = []; a.vm = []; a.lg = []


def footer(a, kname, nv, acc, ns=96):
    a.raw(f'.section .rodata,"a"\n.p2align 6\n.amdhsa_kernel {kname}\n  .amdhsa_next_free_vgpr {nv}\n  .amdhsa_next_free_sgpr {ns}\n'
          f'  .amdhsa_accum_offset {acc}\n  .amdhsa_group_segment_fixed_size 0\n  .amdhsa_kernarg_size 104\n  .amdhsa_user_sgpr_count 2\n'
          f'  .amdhsa_user_sgpr_kernarg_segment_ptr 1\n  .amdhsa_system_sgpr_workgroup_id_x 1\n.end_amdhsa_kernel')


def gemm1(a):
    K = "gemm1_kernel"
    header(a, K)
    I = a.I
    L_CS = 0
    L_UT = L_CS + 512
    L_W1 = L_UT + 4 * 32 * 80
    SX, SW1, SWS = 12, 16, 20
    sBI, sBJ, sW = 24, 25, 26
    sXo0, sXo1, sWo, sM = 27, 28, 29, 30
    vL, vXo, vWo = 1, 2, 3
    vT = 4
    vONE = 12
    vF = 16
    vSL = 48
    vRS, vGR = 56, 64
    vACC = 72
    vX = 128
    aCS = 0
    I("s_cmp_ge_u32 s2, 256\ns_cbranch_scc1 Lg1_end")
    I("s_load_dwordx2 s[4:5], s[0:1], 0\ns_load_dwordx2 s[6:7], s[0:1], 64\ns_load_dwordx2 s[8:9], s[0:1], 96")
    I(f"v_and_b32 v{vL}, 63, v0\nv_lshrrev_b32 v4, 6, v0")
    I(f"v_readfirstlane_b32 s{sW}, v4")
    I(f"s_and_b32 s3, s2, 7\ns_lshr_b32 s10, s2, 3")
    I(f"s_lshr_b32 s{sBI}, s3, 1\ns_lshl_b32 s{sBI}, s{sBI}, 2\ns_and_b32 s11, s10, 3\ns_add_u32 s{sBI}, s{sBI}, s11")
    I(f"s_and_b32 s{sBJ}, s3, 1\ns_lshl_b32 s{sBJ}, s{sBJ}, 3\ns_lshr_b32 s11, s10, 2\ns_add_u32 s{sBJ}, s{sBJ}, s11")
    I(f"v_and_b32 v4, 15, v{vL}\nv_lshrrev_b32 v5, 4, v{vL}\nv_lshlrev_b32 v{vXo}, 10, v4\nv_lshl_add_u32 v{vXo}, v5, 4, v{vXo}")
    I(f"v_mul_u32_u24 v6, 37, v{vL}\nv_lshrrev_b32 v6, 9, v6\nv_mul_u32_u24 v7, 14, v6\nv_sub_u32 v7, v{vL}, v7")
    I(f"v_mul_u32_u24 v{vWo}, 3584, v6\nv_lshl_add_u32 v{vWo}, v7, 4, v{vWo}")
    I(f"s_lshl_b32 s{sXo0}, s{sBI}, 17\ns_lshl_b32 s11, s{sW}, 15\ns_add_u32 s{sXo0}, s{sXo0}, s11\ns_add_u32 s{sXo1}, s{sXo0}, 16384")
    I(f"s_mul_i32 s{sWo}, s{sBJ}, 224\ns_lshr_b32 s11, s{sW}, 1\ns_mul_i32 s11, s11, {16*3584}\ns_add_u32 s{sWo}, s{sWo}, s11")
    I(f"s_and_b32 s11, s{sW}, 1\ns_mul_i32 s11, s11, {4*3584}\ns_add_u32 s{sWo}, s{sWo}, s11")
    I(f"s_mul_i32 s{sM}, s{sW}, {8*224}")
    I("s_mov_b32 s34, -1\ns_mov_b32 s35, 0x00ffffff")
    a.wait_smem()
    srd(a, SX, 4, 2048 * 512 * 2); srd(a, SW1, 6, 512 * 1792 * 2); srd(a, SWS, 8, WS_BYTES)
    NCH = 4; KPC = 16 // NCH
    for c in range(NCH):
        for ks in range(c * KPC, (c + 1) * KPC):
            for T in range(2):
                I(f"buffer_load_dwordx4 {vr(vX + (T*16+ks)*4, 4)}, v{vXo}, {sr(SX,4)}, s{sXo0+T} offen offset:{ks*64}", vm=("ch", c))
        I("s_mov_b64 exec, s[34:35]")
        for ks in range(c * KPC, (c + 1) * KPC):
            for g0 in range(2):
                I(f"s_add_u32 m0, s{sM}, {L_W1 + (32*ks + 4*g0)*224}")
                I(f"s_add_u32 s31, s{sWo}, {(32*ks + 8*g0)*3584}")
                I(f"buffer_load_dwordx4 v{vWo}, {sr(SW1,4)}, s31 offen lds", vm=("ch", c))
        I("s_mov_b64 exec, -1")
        if c == 2:
            a.wait(vm=("ch", 0))
    I(f"s_lshl_b32 s11, s{sBJ}, 6\ns_add_u32 s32, s{sXo0}, s11\ns_add_u32 s33, s{sXo1}, s11")
    for T in range(2):
        I(f"buffer_load_dwordx4 {vr(vSL+4*T,4)}, v{vXo}, {sr(SX,4)}, s{32+T} offen", vm="slice")
    I(f"v_lshrrev_b32 v16, 5, v{vL}\nv_lshlrev_b32 v16, 4, v16")
    I(f"v_bfe_u32 v17, v{vL}, 4, 1\nv_lshl_add_u32 v16, v17, 2, v16")
    I(f"v_bfe_u32 v17, v{vL}, 2, 2\nv_add_u32 v16, v16, v17")
    I(f"v_mul_u32_u24 v16, 224, v16\nv_and_b32 v17, 3, v{vL}\nv_lshl_add_u32 v16, v17, 3, v16")
    I(f"s_cmp_eq_u32 s{sW}, 3\ns_cselect_b32 s36, 0, s{sW}")
    I("s_add_u32 s37, s36, 1\ns_cmp_eq_u32 s37, 3\ns_cselect_b32 s37, 0, s37")
    I("s_add_u32 s38, s37, 1\ns_cmp_eq_u32 s38, 3\ns_cselect_b32 s38, 0, s38")
    for p in range(3):
        I(f"s_lshl_b32 s11, s{36+p}, 6\nv_add_u32 v{vT+p}, s11, v16")
    I(f"v_add_u32 v{vT+3}, 192, v16")
    for p in range(4):
        I(f"v_add_u32 v{vT+4+p}, {8*7168}, v{vT+p}")
    for i in range(4):
        I(f"v_mov_b32 v{vONE+i}, 0x3f803f80")

    def rd(ks, s):
        n = 7 * ks + s
        b = vF + (n % 8) * 4
        base = vT + min(s // 2, 3) + (4 if ks >= 8 else 0)
        for h in range(2):
            off = L_W1 + (ks % 8) * 7168 + h * 1792 + ((s & 1) * 32 if s < 6 else 0)
            I(f"ds_read_b64_tr_b16 {vr(b+2*h,2)}, v{base} offset:{off}", lg=("f", n))

    a.wait(vm=("ch", 0)); I("s_barrier")
    for s in range(7): rd(0, s)
    for ks in range(16):
        if ks % KPC == KPC - 1 and ks < 15:
            a.wait(vm=("ch", ks // KPC + 1)); I("s_barrier")
        for T in range(2):
            xb = vr(vX + (T*16+ks)*4, 4)
            I(f"v_mfma_f32_16x16x32_bf16 {vr(vRS+4*T,4)}, {vr(vONE,4)}, {xb}, {vr(vRS+4*T,4) if ks else 0}")
            I(f"v_mfma_f32_16x16x32_bf16 {vr(vGR+4*T,4)}, {xb}, {xb}, {vr(vGR+4*T,4) if ks else 0}")
        for s in range(7):
            n = 7 * ks + s
            fb = vr(vF + (n % 8) * 4, 4)
            a.wait(lg=("f", n))
            for T in range(2):
                acc = vr(vACC + (s*2+T)*4, 4)
                I(f"v_mfma_f32_16x16x32_bf16 {acc}, {fb}, {vr(vX + (T*16+ks)*4, 4)}, {acc if ks else 0}")
            if s in (0, 1, 6):
                cs = ar(aCS + (s if s < 2 else 2) * 4, 4)
                I(f"v_mfma_f32_16x16x32_bf16 {cs}, {fb}, {vr(vONE,4)}, {cs if ks else 0}")
            if ks < 15: rd(ks + 1, s)
    vCS = 16
    for i in range(8): I(f"v_accvgpr_read_b32 v{vCS+i}, a{aCS+i}")
    for i in range(4): I(f"v_accvgpr_read_b32 v{vCS+24+i}, a{aCS+8+i}")
    I(f"v_lshrrev_b32 v4, 4, v{vL}\nv_lshlrev_b32 v4, 4, v4")
    for p in range(3):
        I(f"s_lshl_b32 s11, s{36+p}, 7\nv_add_u32 v{5+p}, s11, v4")
    I(f"s_mov_b32 s40, 0x00010001\ns_mov_b32 s41, 0x00010001\ns_mov_b64 exec, s[40:41]")
    I(f"ds_write_b128 v5, {vr(vCS,4)} offset:{L_CS}\nds_write_b128 v5, {vr(vCS+4,4)} offset:{L_CS+64}")
    I("s_mov_b64 exec, -1")
    I("s_mov_b32 s42, 0x22222222\ns_mov_b32 s43, 0x22222222\ns_mov_b32 s44, 0x44444444\ns_mov_b32 s45, 0x44444444\ns_mov_b32 s46, 0x88888888\ns_mov_b32 s47, 0x88888888")
    I(f"v_and_b32 v8, 15, v{vL}\nv_lshrrev_b32 v9, 2, v8\nv_lshl_add_u32 v8, v9, 4, v8\nv_lshlrev_b32 v8, 2, v8")
    for T in range(2):
        g = vGR + 4 * T
        I(f"v_cndmask_b32 v{g}, v{g}, v{g+1}, s[42:43]\nv_cndmask_b32 v{g}, v{g}, v{g+2}, s[44:45]\nv_cndmask_b32 v{g}, v{g}, v{g+3}, s[46:47]")
        I(f"ds_bpermute_b32 v{g+1}, v8, v{g}", lg="bp")
    a.wait(lg="all"); I("s_barrier")
    for p in (1, 2):
        for s in range(2):
            I(f"ds_read_b128 {vr(vCS+(2*p+s)*4,4)}, v{5+p} offset:{L_CS+64*s}", lg="cs")
    I("s_mov_b32 s48, 0x3b000000\ns_mov_b32 s49, 0x3727c5ac\n" + f"s_mov_b32 s50, {LOG2E:#x}")
    for T in range(2):
        r, g = vRS + 4 * T, vGR + 4 * T
        I(f"v_mul_f32 v{r}, s48, v{r}")
        I(f"v_mul_f32 v{g}, v{r}, v{r}")
        I(f"v_fma_f32 v{g}, v{g+1}, s48, -v{g}")
        I(f"v_max_f32 v{g}, 0, v{g}")
        bf16r(a, g, g)
        I(f"v_add_f32 v{g}, s49, v{g}")
        bf16r(a, g, g)
        I(f"v_sqrt_f32 v{g}, v{g}")
        bf16r(a, r + 2, g)
        I(f"v_rcp_f32 v{r+3}, v{r+2}")
        bf16r(a, r, r)
        I(f"v_xor_b32 v{r}, 0x80000000, v{r}")
        I(f"v_mul_f32 v{r+1}, s50, v{r+3}\nv_xor_b32 v{r+1}, 0x80000000, v{r+1}")
    a.wait(vm="slice")
    I(f"v_lshrrev_b32 v9, 4, v{vL}\nv_mul_u32_u24 v9, {8*80}, v9\nv_and_b32 v10, 15, v{vL}\nv_lshl_add_u32 v9, v10, 1, v9")
    I(f"s_mul_i32 s11, s{sW}, {32*80}\nv_add_u32 v9, s11, v9")
    for T in range(2):
        r = vRS + 4 * T
        for j in range(4):
            x = vSL + 4 * T + j
            I(f"v_lshlrev_b32 v44, 16, v{x}\nv_and_b32 v45, 0xffff0000, v{x}")
            I(f"v_add_f32 v44, v44, v{r}\nv_add_f32 v45, v45, v{r}")
            I(f"v_cvt_pk_bf16_f32 v46, v44, v45")
            I(f"v_lshlrev_b32 v44, 16, v46\nv_and_b32 v45, 0xffff0000, v46")
            I(f"v_mul_f32 v44, v44, v{r+3}\nv_mul_f32 v45, v45, v{r+3}")
            I(f"v_cvt_pk_bf16_f32 v{x}, v44, v45")
            I(f"ds_write_b16 v9, v{x} offset:{L_UT + (2*j)*80 + T*32}", lg="utw")
            I(f"ds_write_b16_d16_hi v9, v{x} offset:{L_UT + (2*j+1)*80 + T*32}", lg="utw")
    I(f"v_lshrrev_b32 v10, 2, v{vL}\nv_mul_u32_u24 v10, 80, v10\nv_and_b32 v11, 3, v{vL}\nv_lshl_add_u32 v10, v11, 4, v10\nv_add_u32 v10, s11, v10")
    a.wait(lg="all")
    I(f"ds_read_b128 {vr(vSL,4)}, v10 offset:{L_UT}\nds_read_b128 {vr(vSL+4,4)}, v10 offset:{L_UT+16*80}", lg="utr")
    I(f"v_lshlrev_b32 v11, 4, v{vL}")
    I(f"s_lshl_b32 s51, s{sBJ}, 6\ns_lshl_b32 s11, s{sBI}, 2\ns_add_u32 s51, s51, s11\ns_add_u32 s51, s51, s{sW}\ns_lshl_b32 s51, s51, 11\ns_add_u32 s51, s51, {WS_UT}")
    a.wait(lg="all")
    I(f"buffer_store_dwordx4 {vr(vSL,4)}, v11, {sr(SWS,4)}, s51 offen")
    I(f"buffer_store_dwordx4 {vr(vSL+4,4)}, v11, {sr(SWS,4)}, s51 offen offset:1024")
    I(f"s_lshl_b32 s52, s{sBI}, 3\ns_lshl_b32 s11, s{sW}, 1\ns_add_u32 s52, s52, s11\ns_mul_i32 s52, s52, 56")
    I(f"s_lshr_b32 s11, s{sBJ}, 1\ns_mul_i32 s11, s11, 7\ns_add_u32 s52, s52, s11")
    I(f"s_and_b32 s53, s{sBJ}, 1\ns_mul_i32 s54, s53, 3\ns_add_u32 s54, s54, s52")
    I(f"s_mul_i32 s55, s53, 56\ns_add_u32 s55, s55, s52\ns_add_u32 s55, s55, 6\ns_lshl_b32 s55, s55, 10")
    vO = 128

    def silu4(acc, cs, r, out):
        t = 192
        for hlf in range(2):
            A2, C2, Tm = vr(acc + 2*hlf, 2), vr(cs + 2*hlf, 2), vr(t + 2*hlf, 2)
            I(f"v_pk_fma_f32 {A2}, {C2}, {vr(r,2)}, {A2} op_sel_hi:[1,0,1]")
            I(f"v_pk_mul_f32 {Tm}, {A2}, {vr(r,2)} op_sel:[0,1] op_sel_hi:[1,1]")
        for i in range(4): I(f"v_exp_f32 v{t+i}, v{t+i}")
        for hlf in range(2):
            Tm = vr(t + 2*hlf, 2)
            I(f"v_pk_fma_f32 {Tm}, {Tm}, {vr(r+2,2)}, {vr(r+2,2)} op_sel_hi:[1,0,0]")
        for i in range(4): I(f"v_rcp_f32 v{t+i}, v{t+i}")
        for hlf in range(2):
            A2, Tm = vr(acc + 2*hlf, 2), vr(t + 2*hlf, 2)
            I(f"v_pk_mul_f32 {A2}, {A2}, {Tm}")
        for hlf in range(2):
            I(f"v_cvt_pk_bf16_f32 v{out+hlf}, v{acc+2*hlf}, v{acc+2*hlf+1}")

    ob = 0
    for p in range(3):
        I(f"s_add_u32 s56, s54, s{36+p}\ns_lshl_b32 s56, s56, 10\ns_add_u32 s57, s56, {56*1024}")
        for T in range(2):
            o = vO + ob * 4; ob += 1
            for s in range(2):
                silu4(vACC + ((2*p+s)*2+T)*4, vCS + (2*p+s)*4, vRS + 4*T, o + 2*s)
            I(f"buffer_store_dwordx4 {vr(o,4)}, v11, {sr(SWS,4)}, s{56+T} offen")
    o = vO + ob * 4
    for T in range(2):
        silu4(vACC + (12+T)*4, vCS + 24, vRS + 4*T, o + 2*T)
    I(f"buffer_store_dwordx4 {vr(o,4)}, v11, {sr(SWS,4)}, s55 offen")
    a.label("Lg1_end")
    I("s_endpgm")
    footer(a, K, 272, 256)
    return L_W1 + 114688


XROWS = list(range(8)) + [256, 258, 260, 262, 512, 516, 768, 772, 1024, 1280, 1536, 1792, 2048]


def conv(a):
    K = "conv_kernel"
    header(a, K)
    I = a.I
    RP = 272
    STW = 53 * RP
    L_KC = 0
    KCP = 776 * 8
    L_KR = L_KC + 2 * KCP
    CP = 4160
    L_U = L_KR + 8 * CP
    UP = 4608
    L_STB = L_U + 2 * UP
    L_ST = 0
    L_P = 0
    LDS = L_STB + 4 * STW
    assert L_KC % 16 == 0 and L_KR % 16 == 0 and L_U % 16 == 0
    SWS = 20
    sW, sCH, sHF = 24, 25, 26
    vL = 1
    I("s_cmp_ge_u32 s2, 256\ns_cbranch_scc1 Lcv_end")
    I("s_load_dwordx8 s[4:11], s[0:1], 8\ns_load_dwordx4 s[12:15], s[0:1], 40\ns_load_dwordx2 s[16:17], s[0:1], 96")
    I(f"v_and_b32 v{vL}, 63, v0\nv_lshrrev_b32 v4, 6, v0")
    I(f"v_readfirstlane_b32 s{sW}, v4")
    I(f"s_lshl_b32 s3, s2, 9\nv_lshl_add_u32 v2, v0, 1, s3")
    I(f"s_lshr_b32 s{sCH}, s{sW}, 1\ns_and_b32 s{sHF}, s{sW}, 1\ns_lshl_b32 s27, s2, 2")
    a.wait_smem()
    for i in range(4):
        I(f"global_load_ushort v{4+i}, v2, {sr(4+2*i,2)}", vm="par")
    I("s_load_dword s28, s[12:13], s27\ns_load_dword s29, s[14:15], s27")
    srd(a, SWS, 16, WS_BYTES)
    I(f"v_lshrrev_b32 v8, 3, v0\nv_and_b32 v9, 7, v0\nv_lshlrev_b32 v10, 11, v8\nv_lshl_add_u32 v10, v9, 4, v10")
    I(f"s_lshr_b32 s30, s2, 4\ns_lshl_b32 s30, s30, 17\ns_and_b32 s31, s2, 15\ns_lshl_b32 s31, s31, 7\ns_add_u32 s30, s30, s31\ns_add_u32 s30, s30, {WS_UT}\ns_add_u32 s31, s30, 65536")
    vU = 240
    I(f"buffer_load_dwordx4 {vr(vU,4)}, v10, {sr(SWS,4)}, s30 offen", vm="u")
    I(f"buffer_load_dwordx4 {vr(vU+4,4)}, v10, {sr(SWS,4)}, s31 offen", vm="u")
    I(f"v_lshrrev_b32 v11, 2, v9\nv_mul_u32_u24 v11, {UP}, v11\nv_lshl_add_u32 v11, v8, 6, v11\nv_and_b32 v9, 3, v9\nv_lshl_add_u32 v248, v9, 4, v11")
    vG = 224
    I(f"v_lshlrev_b32 v12, 3, v0\nv_sub_u32 v12, 2047, v12")
    I(f"v_cmp_gt_u32 vcc, 200, v12")
    for e in range(11):
        I(f"v_subrev_u32 v13, {e}, v12\nv_cvt_f32_u32 v14, v13\nv_cvt_pk_bf16_f32 v14, v14, v14\nv_and_b32 v14, 0xffff, v14\nv_subrev_u32 v14, 0x4280, v14")
        I(f"v_cndmask_b32 v13, v14, v13, vcc")
        if e >= 8:
            I(f"v_min_u32 v13, 770, v13")
        I(f"v_lshlrev_b32 v{vG+e}, 3, v13")
    I("v_mov_b32 v16, 0\nv_mov_b32 v17, 0\nv_mov_b32 v18, 0\nv_mov_b32 v19, 0")
    I(f"v_lshrrev_b32 v13, 5, v0\nv_and_b32 v14, 31, v0")
    I(f"v_mul_u32_u24 v15, {UP}, v13\nv_lshl_add_u32 v15, v14, 4, v15")
    I(f"v_cmp_gt_u32 vcc, 64, v0\ns_and_saveexec_b64 s[32:33], vcc")
    I(f"ds_write_b128 v15, v[16:19] offset:{L_U}")
    I("s_mov_b64 exec, s[32:33]")
    I(f"v_lshrrev_b32 v13, 2, v0\nv_and_b32 v14, 3, v0\nv_mul_u32_u24 v15, {CP}, v13\nv_lshl_add_u32 v15, v14, 4, v15")
    I(f"v_cmp_gt_u32 vcc, 32, v0\ns_and_saveexec_b64 s[32:33], vcc")
    I(f"ds_write_b128 v15, v[16:19] offset:{L_KR+4096}")
    I(f"v_mov_b32 v15, 0\nds_write_b64 v15, v[16:17] offset:{L_KC+770*8}\nds_write_b64 v15, v[16:17] offset:{L_KC+KCP+770*8}")
    I("s_mov_b64 exec, s[32:33]")
    a.wait_smem()
    I(f"s_lshl_b32 s34, s{sCH}, 4\ns_lshr_b32 s28, s28, s34\ns_lshl_b32 s28, s28, 16\ns_lshr_b32 s29, s29, s34\ns_lshl_b32 s29, s29, 16")
    I(f"s_mov_b32 s35, {LOG2E:#x}\ns_mov_b32 s36, {INV2PI:#x}")
    I(f"v_mov_b32 v12, s28\nv_mul_f32 v12, s35, v12\nv_exp_f32 v12, v12")
    bf16r(a, 12, 12)
    a.wait(vm="par")
    for i in range(4): I(f"v_lshlrev_b32 v{4+i}, 16, v{4+i}")
    I(f"v_mul_f32 v4, s35, v4\nv_exp_f32 v4, v4")
    bf16r(a, 4, 4)
    I(f"v_mul_f32 v4, v4, v12\nv_mul_f32 v4, s35, v4\nv_xor_b32 v4, 0x80000000, v4")
    I(f"v_mul_f32 v5, v5, v12\nv_mul_f32 v5, s36, v5")
    I(f"v_mul_f32 v6, v6, v12\nv_mul_f32 v7, v7, v12")
    I(f"v_max_f32 v13, |v6|, |v7|")
    for sh in (1, 2, 4, 8):
        I(f"v_max_f32_dpp v13, v13, v13 row_shr:{sh} row_mask:0xf bank_mask:0xf")
    I("v_readlane_b32 s38, v13, 15\nv_readlane_b32 s39, v13, 31\nv_readlane_b32 s40, v13, 47\nv_readlane_b32 s41, v13, 63")
    I("s_max_u32 s38, s38, s39\ns_max_u32 s40, s40, s41\ns_max_u32 s38, s38, s40")
    I("s_lshr_b32 s38, s38, 23\ns_max_u32 s38, s38, 2\ns_min_u32 s38, s38, 250")
    I("s_sub_u32 s39, 253, s38\ns_lshl_b32 s39, s39, 23")
    I("s_add_u32 s40, s38, 2\ns_lshl_b32 s40, s40, 23")
    I(f"v_mul_f32 v6, s39, v6\nv_mul_f32 v7, s39, v7")

    def cexp(d, p):
        I(f"v_mul_f32 v14, {float(p)}, v4" if p in (1,) else f"v_mul_f32 v14, {fl(p)}, v4")
        I(f"v_mul_f32 v15, {fl(p)}, v5\nv_exp_f32 v14, v14\nv_fract_f32 v15, v15")
        I(f"v_cos_f32 v{d}, v15\nv_sin_f32 v{d+1}, v15")
        I(f"v_mul_f32 v{d}, v{d}, v14\nv_mul_f32 v{d+1}, v{d+1}, v14")

    import struct
    def fl(p): return f"{struct.unpack('<I', struct.pack('<f', float(p)))[0]:#x}"

    def cmul(d, x, y):
        I(f"v_pk_mul_f32 {vr(d,2)}, {vr(x,2)}, {vr(y,2)} op_sel:[0,0] op_sel_hi:[0,1]")
        I(f"v_pk_fma_f32 {vr(d,2)}, {vr(x,2)}, {vr(y,2)}, {vr(d,2)} op_sel:[1,1,0] op_sel_hi:[1,0,1] neg_lo:[0,1,0]")

    E1, E8, E256, E32 = 20, 22, 24, 26
    cexp(E1, 1); cexp(E8, 8); cexp(E256, 256); cexp(E32, 32)
    vXv = 32
    vYv = 80
    I(f"s_mul_i32 s41, s{sW}, {STW}\ns_add_u32 s41, s41, {L_STB}\nv_lshl_add_u32 v16, v{vL}, 2, s41")
    tmp = [0]
    def put(row, src, neg):
        t = 144 + (tmp[0] % 8); tmp[0] += 1
        I(f"v_cvt_pk_f16_f32 v{t}, v{src}, {'-' if neg else ''}v{src+1}")
        I(f"ds_write_b32 v16, v{t} offset:{L_ST + row*RP}", lg="st")
    X = lambda i: vXv + 2 * i
    Y = lambda c: vYv + 2 * c
    I(f"v_mov_b32 v{X(0)}, v6\nv_mov_b32 v{X(0)+1}, v7\nv_mov_b32 v{Y(0)}, 1.0\nv_mov_b32 v{Y(0)+1}, 0\nv_mov_b32 v{Y(1)}, v{E8}\nv_mov_b32 v{Y(1)+1}, v{E8+1}")
    xs = [(i, i - 1, E1) for i in range(1, 8)] + [(8, 0, E256), (9, 2, E256), (10, 4, E256), (11, 6, E256), (12, 8, E256), (13, 10, E256),
          (14, 12, E256), (15, 13, E256), (16, 14, E256), (17, 16, E256), (18, 17, E256), (19, 18, E256), (20, 19, E256)]
    ys = [(2, 1, E8), (3, 2, E8)] + [(c, c - 4, E32) for c in range(4, 32)]
    put(0, X(0), True); put(21, Y(0), False); put(22, Y(1), False)
    xi = yi = 0
    while xi < len(xs) or yi < len(ys):
        done = []
        if yi < len(ys):
            d, s_, e = ys[yi]; yi += 1; cmul(Y(d), Y(s_), e); done.append((21 + d, Y(d), False))
        if xi < len(xs):
            d, s_, e = xs[xi]; xi += 1; cmul(X(d), X(s_), e); done.append((d, X(d), True))
        if yi < len(ys) and yi > 2:
            d, s_, e = ys[yi]; yi += 1; cmul(Y(d), Y(s_), e); done.append((21 + d, Y(d), False))
        for r_, s_, n_ in done: put(r_, s_, n_)
    I(f"v_and_b32 v17, 31, v{vL}\nv_lshrrev_b32 v18, 5, v{vL}\nv_lshlrev_b32 v18, 4, v18\nv_add_u32 v18, s41, v18")
    I(f"v_min_u32 v19, 20, v17\nv_mad_u32_u24 v19, v19, {RP}, v18" if False else f"v_min_u32 v19, 20, v17\nv_mul_u32_u24 v19, {RP}, v19\nv_add_u32 v19, v19, v18")
    I(f"v_mul_u32_u24 v20, {RP}, v17\nv_add_u32 v20, v20, v18")
    a.wait(lg="all")
    vFA, vFB, vD = 32, 64, 96
    for ks in range(8):
        I(f"ds_read_b128 {vr(vFA+4*ks,4)}, v19 offset:{L_ST + ks*32}", lg=("k", ks))
        I(f"ds_read_b128 {vr(vFB+4*ks,4)}, v20 offset:{L_ST + 21*RP + ks*32}", lg=("k", ks))
    for ks in range(8):
        a.wait(lg=("k", ks))
        I(f"v_mfma_f32_32x32x16_f16 {vr(vD,16)}, {vr(vFA+4*ks,4)}, {vr(vFB+4*ks,4)}, {vr(vD,16) if ks else 0}")
    a.wait(vm="u")
    I(f"ds_write_b128 v248, {vr(vU,4)} offset:{L_U+512}\nds_write_b128 v248, {vr(vU+4,4)} offset:{L_U+512+2048}")
    I(f"s_mul_i32 s42, s{sCH}, {KCP}\ns_lshl_b32 s43, s{sHF}, 2\ns_add_u32 s42, s42, s43")
    I(f"v_lshrrev_b32 v18, 5, v{vL}")
    I(f"v_lshlrev_b32 v21, 6, v17\nv_lshl_add_u32 v21, v18, 5, v21\nv_add_u32 v21, s42, v21")
    I(f"v_cmp_eq_u32 vcc, 0, v18")
    I(f"v_lshlrev_b32 v22, 5, v17\nv_add_u32 v22, {256*8}, v22")
    I(f"v_lshlrev_b32 v23, 4, v17\nv_add_u32 v23, {384*8}, v23")
    I(f"v_add_u32 v24, 16, v22\nv_add_u32 v25, {64*8}, v23")
    I(f"v_cndmask_b32 v22, v23, v22, vcc\nv_cndmask_b32 v24, v25, v24, vcc\nv_add_u32 v22, s42, v22\nv_add_u32 v24, s42, v24")
    I(f"v_lshlrev_b32 v26, 3, v17\nv_lshl_add_u32 v26, v18, 10, v26\nv_add_u32 v26, s42, v26")
    for i in range(12): I(f"v_mul_f32 v{vD+i}, s40, v{vD+i}")
    for r in range(4): I(f"ds_write_b32 v21, v{vD+r} offset:{L_KC + 8*r}")
    for r in range(4): I(f"ds_write_b32 v{22 if r < 2 else 24}, v{vD+4+r} offset:{L_KC + 8*(r&1)}")
    for r in range(4): I(f"ds_write_b32 v26, v{vD+8+r} offset:{L_KC + 512*8 + 256*r}")
    a.wait(lg="all"); I("s_barrier")
    I(f"v_lshlrev_b32 v16, 4, v0")
    for ch in range(2):
        b = 32 + ch * 48
        for e in range(11):
            I(f"ds_read_b64 {vr(b+2*e,2)}, v{vG+e} offset:{L_KC + ch*KCP}", lg=("g", ch))
    for ch in range(2):
        b = 32 + ch * 48; o = b + 24
        a.wait(lg=("g", ch))
        for e in range(11): I(f"v_add_f32 v{b+2*e}, v{b+2*e}, v{b+2*e+1}")
        for sg in range(4):
            for j in range(4):
                I(f"v_cvt_pk_bf16_f32 v{o+4*sg+j}, v{b+2*(sg+2*j)}, v{b+2*(sg+2*j+1)}")
            I(f"ds_write_b128 v16, {vr(o+4*sg,4)} offset:{L_KR + (ch*4+sg)*CP}")
    I(f"v_and_b32 v17, 15, v{vL}\nv_lshrrev_b32 v18, 4, v{vL}\nv_not_b32 v19, v17\nv_and_b32 v19, 3, v19")
    I(f"v_add_u32 v20, v17, v19\nv_lshlrev_b32 v21, 3, v18\nv_sub_u32 v20, v21, v20")
    I(f"v_add_u32 v20, {2031 - 32*(56+3)}, v20\nv_lshlrev_b32 v20, 1, v20")
    I(f"v_mul_u32_u24 v19, {CP}, v19\nv_add_u32 v20, v20, v19")
    I(f"s_mul_i32 s44, s{sCH}, {4*CP}\ns_lshl_b32 s45, s{sHF}, 8\ns_sub_u32 s44, s44, s45\ns_add_u32 s44, s44, {L_KR}\nv_add_u32 v20, s44, v20")
    I(f"v_lshlrev_b32 v21, 5, v17\nv_lshl_add_u32 v21, v18, 4, v21")
    I(f"s_mul_i32 s46, s{sCH}, {UP}\ns_sub_u32 s46, s46, s45\ns_add_u32 s46, s46, {L_U + 480 - 192}\nv_add_u32 v21, s46, v21")
    a.wait(lg="all"); I("s_barrier")
    vA = [32, 96]; vB = [64, 128]; vC = 160
    def ld(c):
        for i in range(8):
            off = 512 * (7 - i) + 64 * (3 - c)
            I(f"ds_read_b64 {vr(vA[c&1]+4*i,2)}, v20 offset:{off}\nds_read_b64 {vr(vA[c&1]+4*i+2,2)}, v20 offset:{off+8}", lg=("c", c))
            I(f"ds_read_b128 {vr(vB[c&1]+4*i,4)}, v21 offset:{512*i + 64*(3-c)}", lg=("c", c))
    ld(0)
    for c in range(4):
        a.wait(lg="all")
        if c < 3: ld(c + 1)
        for q1 in range(8):
            for j in range(q1, 8):
                acc = vr(vC + 4 * j, 4)
                first = (c == 0 and q1 == 0)
                I(f"v_mfma_f32_16x16x32_bf16 {acc}, {vr(vA[c&1]+4*q1,4)}, {vr(vB[c&1]+4*(j-q1),4)}, {0 if first else acc}")
    I(f"s_lshl_b32 s47, s{sW}, 13\ns_add_u32 s47, s47, {L_STB}\nv_lshl_add_u32 v22, v{vL}, 4, s47")
    for j in range(8): I(f"ds_write_b128 v22, {vr(vC+4*j,4)} offset:{L_P + 1024*j}")
    I(f"v_lshrrev_b32 v23, 1, v18\nv_and_b32 v24, 1, v18")
    I(f"v_lshlrev_b32 v25, 10, v23\nv_lshl_add_u32 v25, v24, 9, v25\nv_lshl_add_u32 v25, v17, 4, v25")
    I(f"s_lshl_b32 s48, s{sCH}, 14\ns_lshl_b32 s49, s{sHF}, 12\ns_add_u32 s48, s48, s49\ns_add_u32 s48, s48, {L_STB}\nv_add_u32 v25, s48, v25")
    I(f"v_lshlrev_b32 v26, 9, v23\nv_lshl_add_u32 v26, v17, 5, v26\nv_lshl_add_u32 v26, v24, 4, v26\ns_lshl_b32 s49, s{sHF}, 11\nv_add_u32 v26, s49, v26")
    I(f"s_mul_i32 s50, s{sCH}, {UP}\nv_add_u32 v27, s50, v26")
    I(f"s_lshl_b32 s51, s2, 1\ns_add_u32 s51, s51, s{sCH}\ns_lshl_b32 s51, s51, 12\ns_add_u32 s51, s51, {WS_S}")
    a.wait(lg="all"); I("s_barrier")
    for u in range(2):
        b = 32 + 24 * u
        for pw in range(2):
            for e in range(2):
                I(f"ds_read_b128 {vr(b+8*pw+4*e,4)}, v25 offset:{L_P + pw*8192 + u*2048 + e*256}", lg=("p", u))
        I(f"ds_read_b128 {vr(b+16,4)}, v27 offset:{L_U + 512 + u*1024}", lg=("p", u))
    for u in range(2):
        b = 32 + 24 * u
        a.wait(lg=("p", u))
        for i in range(4): I(f"v_pk_add_f32 {vr(b+2*i,2)}, {vr(b+2*i,2)}, {vr(b+8+2*i,2)}")
        for i in range(4):
            I(f"v_lshlrev_b32 v{b+8}, 16, v{b+16+i}\nv_and_b32 v{b+9}, 0xffff0000, v{b+16+i}")
            I(f"v_fma_f32 v{b+2*i}, v{b+8}, s29, v{b+2*i}\nv_fma_f32 v{b+2*i+1}, v{b+9}, s29, v{b+2*i+1}")
            I(f"v_cvt_pk_bf16_f32 v{b+20+i}, v{b+2*i}, v{b+2*i+1}")
        I(f"buffer_store_dwordx4 {vr(b+20,4)}, v26, {sr(SWS,4)}, s51 offen offset:{u*1024}")
    a.label("Lcv_end")
    I("s_endpgm")
    footer(a, K, 256, 256)
    return LDS


def gemm2(a):
    K = "gemm2_kernel"
    header(a, K)
    I = a.I
    SP = 144
    L_S = 0
    L_W = 64 * SP
    L_REDB = L_W
    L_RED = 0
    LDS = L_W + 114688
    SX, SW2, SWS, SO = 12, 16, 20, 24
    sTI, sDJ, sW = 28, 29, 30
    vL = 1
    I("s_cmp_ge_u32 s2, 256\ns_cbranch_scc1 Lg2_end")
    I("s_load_dwordx2 s[4:5], s[0:1], 0\ns_load_dwordx4 s[8:11], s[0:1], 72\ns_load_dwordx2 s[6:7], s[0:1], 96")
    I(f"v_and_b32 v{vL}, 63, v0\nv_lshrrev_b32 v4, 6, v0")
    I(f"v_readfirstlane_b32 s{sW}, v4")
    I(f"s_and_b32 s3, s2, 7\ns_lshr_b32 s31, s2, 3\ns_lshl_b32 s{sTI}, s3, 2\ns_and_b32 s32, s31, 3\ns_add_u32 s{sTI}, s{sTI}, s32\ns_lshr_b32 s{sDJ}, s31, 2")
    I(f"v_lshrrev_b32 v4, 3, v{vL}\nv_and_b32 v5, 7, v{vL}\nv_lshrrev_b32 v6, 4, v{vL}\nv_lshlrev_b32 v7, 1, v6\nv_xor_b32 v7, v5, v7")
    I(f"v_lshlrev_b32 v2, 10, v4\nv_lshl_add_u32 v2, v7, 4, v2")
    I(f"v_lshlrev_b32 v3, 4, v{vL}")
    I(f"s_mul_i32 s33, s{sW}, {448*1024}\ns_lshl_b32 s34, s{sDJ}, 7\ns_add_u32 s33, s33, s34")
    I(f"s_mul_i32 s35, s{sW}, {7*4096}")
    I(f"s_mul_i32 s36, s{sTI}, {4*56}\ns_mul_i32 s37, s{sW}, 14\ns_add_u32 s36, s36, s37\ns_lshl_b32 s36, s36, 10")
    I(f"v_bfe_u32 v8, v{vL}, 2, 2\nv_lshl_add_u32 v9, v6, 2, v8")
    I(f"v_lshrrev_b32 v10, 1, v9\nv_and_b32 v10, 3, v10")
    I(f"v_and_b32 v11, 3, v{vL}\nv_lshlrev_b32 v11, 3, v11\nv_lshl_add_u32 v11, v9, 7, v11\nv_add_u32 v11, s35, v11")
    for dt in range(4):
        I(f"v_xor_b32 v12, {dt}, v10\nv_lshl_add_u32 v{16+dt}, v12, 5, v11")
    a.wait_smem()
    srd(a, SX, 4, 2048 * 512 * 2); srd(a, SW2, 8, 1792 * 512 * 2); srd(a, SWS, 6, WS_BYTES); srd(a, SO, 10, 2048 * 512 * 2)

    def rows(pbl, u, i):
        h = i >> 1
        if u < 3: base = 224 * pbl + 32 * u + 16 * h
        elif u < 6: base = 224 * pbl + 112 + 32 * (u - 3) + 16 * h
        else: base = 224 * pbl + (96 if h == 0 else 208)
        return base + 8 * (i & 1)

    def dma(pbl):
        for u in range(7):
            for i in range(4):
                I(f"s_add_u32 m0, s35, {L_W + u*4096 + i*1024}\ns_add_u32 s38, s33, {rows(pbl,u,i)*1024}")
                I(f"buffer_load_dwordx4 v2, {sr(SW2,4)}, s38 offen lds", vm=("w", pbl, u))

    def trr(pbl):
        for u in range(7):
            a.wait(vm=("w", pbl, u))
            for dt in range(4):
                for h in range(2):
                    I(f"ds_read_b64_tr_b16 {ar(((pbl*7+u)*4+dt)*4+2*h,2)}, v{16+dt} offset:{L_W + u*4096 + h*2048}", lg="w")
    vH = 96
    NR = 10
    vACC = 32
    def hld(k):
        for tt in range(4):
            I(f"s_add_u32 s39, s36, {(tt*56 + k)*1024}")
            I(f"buffer_load_dwordx4 {vr(vH + (k%NR)*16 + 4*tt,4)}, v3, {sr(SWS,4)}, s39 offen", vm=("h", k))
    dma(0)
    for k in range(7): hld(k)
    trr(0)
    a.wait(lg="all")
    dma(1)
    I(f"v_lshlrev_b32 v20, 12, v4\nv_lshl_add_u32 v20, v5, 4, v20")
    I(f"s_lshl_b32 s40, s{sDJ}, 6\ns_lshl_b32 s41, s{sW}, 4\ns_add_u32 s40, s40, s41\ns_lshl_b32 s40, s40, 12\ns_lshl_b32 s41, s{sTI}, 7\ns_add_u32 s40, s40, s41\ns_add_u32 s40, s40, {WS_S}\ns_add_u32 s41, s40, {8*4096}")
    I(f"buffer_load_dwordx4 v[24:27], v20, {sr(SWS,4)}, s40 offen\nbuffer_load_dwordx4 v[28:31], v20, {sr(SWS,4)}, s41 offen", vm="s")
    for k in range(7, 10): hld(k)

    def mm(k):
        a.wait(vm=("h", k))
        hb = vH + (k % NR) * 16
        if k % 7 == 6:
            for pr in range(2):
                e, o = hb + 8 * pr, hb + 8 * pr + 4
                I(f"v_swap_b32 v{e+2}, v{o}\nv_swap_b32 v{e+3}, v{o+1}")
        for dt in range(4):
            for tt in range(4):
                acc = vr(vACC + (dt*4+tt)*4, 4)
                I(f"v_mfma_f32_16x16x32_bf16 {acc}, {ar((k*4+dt)*4,4)}, {vr(hb+4*tt,4)}, {acc if k else 0}")
        if k + NR < 14: hld(k + NR)
    for k in range(7): mm(k)
    trr(1)
    I(f"v_mul_u32_u24 v21, {SP}, v4\nv_lshl_add_u32 v21, v5, 4, v21\ns_mul_i32 s42, s{sW}, {16*SP}\nv_add_u32 v21, s42, v21")
    a.wait(vm="s")
    I(f"ds_write_b128 v21, v[24:27] offset:{L_S}\nds_write_b128 v21, v[28:31] offset:{L_S+8*SP}")
    a.wait(lg="all")
    I(f"v_and_b32 v22, 15, v{vL}\nv_lshlrev_b32 v23, 10, v22\nv_lshl_add_u32 v23, v6, 4, v23")
    I(f"s_lshl_b32 s43, s{sTI}, 16\ns_lshl_b32 s44, s{sW}, 14\ns_add_u32 s43, s43, s44\ns_add_u32 s43, s43, s34")
    I(f"buffer_load_dwordx4 v[24:27], v23, {sr(SX,4)}, s43 offen\nbuffer_load_dwordx4 v[28:31], v23, {sr(SX,4)}, s43 offen offset:64", vm="x")
    for k in range(7, 14): mm(k)
    I("s_barrier")
    I(f"s_lshl_b32 s45, s{sW}, 14\ns_add_u32 s45, s45, {L_REDB}\nv_add_u32 v8, s45, v3")
    for i in range(16): I(f"ds_write_b128 v8, {vr(vACC+4*i,4)} offset:{L_RED + 1024*i}")
    I(f"v_lshrrev_b32 v9, 1, v6\nv_and_b32 v10, 1, v6\nv_lshlrev_b32 v9, 12, v9\nv_lshl_add_u32 v9, v10, 9, v9\nv_lshl_add_u32 v9, v22, 4, v9\ns_lshl_b32 s45, s{sW}, 10\ns_add_u32 s45, s45, {L_REDB}\nv_add_u32 v9, s45, v9")
    I(f"v_bfe_u32 v10, v{vL}, 2, 2\nv_lshl_add_u32 v10, v6, 3, v10\nv_mul_u32_u24 v10, {SP}, v10\nv_and_b32 v11, 3, v{vL}\nv_lshl_add_u32 v10, v11, 3, v10\ns_lshl_b32 s45, s{sW}, 5\nv_add_u32 v10, s45, v10")
    I(f"s_mov_b32 s46, {LOG2E | 0x80000000:#x}")
    a.wait(lg="all"); I("s_barrier")
    for u in range(2):
        b = 96 + 40 * u
        for p in range(4):
            for e in range(2):
                I(f"ds_read_b128 {vr(b+8*p+4*e,4)}, v9 offset:{L_RED + p*16384 + u*8192 + e*256}", lg=("r", u))
        for hh in range(2):
            I(f"ds_read_b64_tr_b16 {vr(b+32+2*hh,2)}, v10 offset:{L_S + (32*u + 4*hh)*SP}", lg=("r", u))
    a.wait(vm="x")
    for u in range(2):
        b = 96 + 40 * u
        a.wait(lg=("r", u))
        for i in range(4):
            I(f"v_pk_add_f32 {vr(b+2*i,2)}, {vr(b+2*i,2)}, {vr(b+8+2*i,2)}\nv_pk_add_f32 {vr(b+16+2*i,2)}, {vr(b+16+2*i,2)}, {vr(b+24+2*i,2)}")
        for i in range(4): I(f"v_pk_add_f32 {vr(b+2*i,2)}, {vr(b+2*i,2)}, {vr(b+16+2*i,2)}")
        for i in range(8): I(f"v_mul_f32 v{b+8+i}, s46, v{b+i}")
        for i in range(8): I(f"v_exp_f32 v{b+8+i}, v{b+8+i}")
        for i in range(8): I(f"v_add_f32 v{b+8+i}, 1.0, v{b+8+i}")
        for i in range(8): I(f"v_rcp_f32 v{b+8+i}, v{b+8+i}")
        for i in range(8): I(f"v_mul_f32 v{b+i}, v{b+i}, v{b+8+i}")
        for i in range(4):
            xs_, ss_ = 24 + 4 * u + i, b + 32 + i
            I(f"v_lshlrev_b32 v{b+16}, 16, v{xs_}\nv_and_b32 v{b+17}, 0xffff0000, v{xs_}\nv_lshlrev_b32 v{b+18}, 16, v{ss_}\nv_and_b32 v{b+19}, 0xffff0000, v{ss_}")
            I(f"v_fma_f32 v{b+16}, v{b+18}, v{b+2*i}, v{b+16}\nv_fma_f32 v{b+17}, v{b+19}, v{b+2*i+1}, v{b+17}")
            I(f"v_cvt_pk_bf16_f32 v{b+36+i}, v{b+16}, v{b+17}")
        I(f"buffer_store_dwordx4 {vr(b+36,4)}, v23, {sr(SO,4)}, s43 offen offset:{64*u}")
    a.label("Lg2_end")
    I("s_endpgm")
    footer(a, K, 480, 256)
    return LDS


def main():
    a = Asm()
    a.raw('.amdgcn_target "amdgcn-amd-amdhsa--gfx950"')
    l1 = gemm1(a); l2 = conv(a); l3 = gemm2(a)
    head = (f"; @launch kernel=gemm1_kernel grid=(256,1,1) block=(256,1,1) lds={l1}\n"
            f"; @launch kernel=conv_kernel grid=(256,1,1) block=(256,1,1) lds={l2}\n"
            f"; @launch kernel=gemm2_kernel grid=(256,1,1) block=(256,1,1) lds={l3}\n")
    out = sys.argv[1] if len(sys.argv) > 1 else f"cdna_kernels/{NAME}.s"
    open(out, "w").write(head + a.text())
    print("written", out, "lds", l1, l2, l3, "nops", a.nnop)

main()
```

```python
import re

REG_RE = re.compile(r"(?<![\w.])([vas])(?:(\d+)|\[(\d+):(\d+)\])(?![\w])")
TRANS = ("v_exp_f32", "v_log_f32", "v_rcp_f32", "v_rsq_f32", "v_sqrt_f32", "v_sin_f32", "v_cos_f32")


def regs_of(tok):
    out = set()
    for m in REG_RE.finditer(tok):
        k = m.group(1)
        if m.group(2) is not None:
            out.add((k, int(m.group(2))))
        else:
            for i in range(int(m.group(3)), int(m.group(4)) + 1):
                out.add((k, i))
    if re.search(r"\bvcc\b", tok):
        out.add(("s", 106)); out.add(("s", 107))
    if re.search(r"\bm0\b", tok):
        out.add(("s", 124))
    if re.search(r"\bexec\b", tok):
        out.add(("s", 126)); out.add(("s", 127))
    return out


def split_ops(s):
    ops, depth, cur = [], 0, ""
    for ch in s:
        if ch == "[": depth += 1
        if ch == "]": depth -= 1
        if ch == "," and depth == 0:
            ops.append(cur.strip()); cur = ""
        else:
            cur += ch
    if cur.strip(): ops.append(cur.strip())
    return ops


class Ins:
    __slots__ = ("text", "mn", "cls", "wr", "rd", "rdA", "rdC", "passes", "states", "dpp", "wide_store", "data", "lds_m0")

    def __init__(self, text):
        self.text = text
        t = text.split(";")[0].strip()
        parts = t.split(None, 1)
        mn = parts[0]
        rest = parts[1] if len(parts) > 1 else ""
        self.mn = mn
        ops = split_ops(rest)
        self.wr, self.rd, self.rdA, self.rdC = set(), set(), set(), set()
        self.passes = 0
        self.states = 1
        self.dpp = ("dpp" in mn) or bool(re.search(r"\b(row_|quad_perm|wave_|bank_mask)", rest))
        self.wide_store = False
        self.data = set()
        self.lds_m0 = False
        R = [regs_of(o) for o in ops]
        allr = set().union(*R) if R else set()
        if mn == "s_nop":
            self.cls = "nop"; self.states = int(ops[0], 0) + 1
        elif mn.startswith("v_mfma"):
            self.cls = "mfma"
            self.wr = R[0]; self.rdA = R[1] | R[2]; self.rdC = R[3]; self.rd = self.rdA | self.rdC
            self.passes = 8 if "32x32" in mn else 4
        elif mn.startswith("v_cmp"):
            self.cls = "valu"; self.wr = R[0]; self.rd = set().union(*R[1:])
        elif mn.startswith("v_readfirstlane") or mn.startswith("v_readlane"):
            self.cls = "valu"; self.wr = R[0]; self.rd = set().union(*R[1:])
        elif mn.startswith("v_swap") or mn.startswith("v_permlane"):
            self.cls = "valu"; self.wr = R[0] | R[1]; self.rd = R[0] | R[1]
        elif mn.startswith("v_"):
            self.cls = "valu"; self.wr = set(R[0]); self.rd = set().union(*R[1:]) if len(R) > 1 else set()
            if "_co_" in mn:
                self.wr |= R[1]
            if mn.startswith(("v_fmac", "v_dot2c", "v_pk_fmac")) or self.dpp or "sdwa" in mn:
                self.rd |= R[0]
            if mn.startswith("v_cndmask") and len(ops) == 3:
                self.rd |= regs_of("vcc")
        elif mn.startswith("ds_"):
            self.cls = "ds"
            if mn.startswith(("ds_read", "ds_bpermute", "ds_permute", "ds_swizzle")):
                self.wr = R[0]; self.rd = set().union(*R[1:]) if len(R) > 1 else set()
                if "d16" in mn: self.rd |= R[0]
            else:
                self.rd = allr
            if "addtid" in mn: self.lds_m0 = True
        elif mn.startswith(("global_", "buffer_", "flat_")):
            self.cls = "vmem"
            is_lds = bool(re.search(r"\blds\b", rest)) or "_lds_" in mn
            if "load" in mn and not is_lds:
                self.wr = R[0]; self.rd = set().union(*R[1:])
                if "d16" in mn: self.rd |= R[0]
            elif "atomic" in mn and re.search(r"\bsc0\b", rest):
                self.wr = R[0]; self.rd = allr
            else:
                self.rd = allr
            if is_lds: self.lds_m0 = True
            if "store" in mn and ("x3" in mn or "x4" in mn):
                self.wide_store = True
                self.data = R[1] if mn.startswith(("global_", "flat_")) else R[0]
        elif mn.startswith("s_"):
            self.cls = "salu"
            if mn.startswith(("s_cmp", "s_waitcnt", "s_barrier", "s_branch", "s_cbranch", "s_endpgm", "s_sleep", "s_setprio", "s_bitcmp")):
                self.rd = allr
            else:
                self.wr = set(R[0]) if R else set(); self.rd = set().union(*R[1:]) if len(R) > 1 else set()
                if "saveexec" in mn: self.wr |= regs_of("exec")
        else:
            raise ValueError("unknown instruction: " + text)


T_C = {2: 4, 4: 6, 8: 10, 16: 18}
T_AB = {2: 5, 4: 8, 8: 12, 16: 20}
T_WAR = {2: 1, 4: 3, 8: 7, 16: 15}


def need(p, c):
    n = 0
    vec = lambda s: {r for r in s if r[0] in "va"}
    sg = lambda s: {r for r in s if r[0] == "s"}
    if p.cls == "valu":
        pv, ps = vec(p.wr), sg(p.wr)
        if c.cls == "mfma" and pv & c.rd: n = max(n, 2)
        if p.mn.startswith(TRANS) and pv & (c.rd | c.wr) and c.cls in ("valu", "ds", "vmem"): n = max(n, 1)
        if p.mn.startswith("v_dot") and pv & (c.rd | c.wr) and not (c.mn == p.mn):
            n = max(n, 3)
        if ps:
            if c.cls == "vmem" and ps & c.rd: n = max(n, 5)
            if c.cls == "valu" and ps & c.rd:
                n = max(n, 4 if c.mn.startswith(("v_readlane", "v_writelane")) else 2)
            if c.cls == "salu" and ps & c.rd: n = max(n, 1)
        if c.cls == "valu" and pv & c.rd:
            if c.mn.startswith(("v_readlane", "v_readfirstlane")): n = max(n, 1)
            if c.dpp or c.mn.startswith("v_permlane"): n = max(n, 2)
        if ("sdwa" in p.mn or "op_sel" in p.text) and c.cls == "valu" and pv & (c.rd | c.wr) and not p.mn.startswith("v_pk_"):
            n = max(n, 1)
    if p.cls == "mfma":
        D = p.wr
        if c.cls == "mfma":
            if D & c.rdA: n = max(n, T_AB[p.passes])
            if D & c.rdC:
                if not (c.rdC == D and c.passes == p.passes): n = max(n, T_C[p.passes])
            elif D & c.wr:
                n = max(n, T_C[p.passes])
        elif c.cls in ("valu", "ds", "vmem"):
            if D & (c.rd | c.wr): n = max(n, T_AB[p.passes])
            if c.cls == "valu" and p.rdC & c.wr: n = max(n, T_WAR[p.passes])
            if c.cls in ("ds", "vmem") and p.rdC & c.wr: n = max(n, T_WAR[p.passes])
    if p.cls == "salu" and ("s", 124) in p.wr and c.lds_m0: n = max(n, 1)
    if p.wide_store and p.data & c.wr: n = max(n, 2)
    return n


class Asm:
    def __init__(self):
        self.lines = []
        self.hist = []
        self.vm = []
        self.lg = []
        self.nnop = 0

    def raw(self, s):
        self.lines.append(s)

    def label(self, name, pad=True):
        self.lines.append(name + ":")

    def comment(self, s):
        self.lines.append("    ; " + s)

    def I(self, text, vm=None, lg=None):
        for t in text.split("\n"):
            t = t.strip()
            if not t: continue
            ins = Ins(t)
            dist = 0; req = 0
            for p in reversed(self.hist):
                r = need(p, ins) - dist
                if r > req: req = r
                dist += p.states
                if dist >= 20: break
            while req > 0:
                k = min(req, 16)
                nop = Ins(f"s_nop {k-1}")
                self.lines.append("    " + nop.text); self.hist.append(nop); self.nnop += 1
                req -= k
            self.lines.append("    " + t)
            self.hist.append(ins)
            if len(self.hist) > 40: self.hist = self.hist[-30:]
            if ins.cls == "vmem" and not ins.mn.startswith(("buffer_inv", "buffer_wbl2")): self.vm.append(vm)
            if ins.cls == "ds": self.lg.append(lg)

    def _n_after(self, lst, tag):
        idx = [i for i, t in enumerate(lst) if (t in tag if isinstance(tag, list) else t == tag)]
        if not idx: return None
        return len(lst) - 1 - idx[-1]

    def wait(self, vm=None, lg=None):
        parts = []
        if vm is not None:
            if vm == "all": n = 0 if self.vm else None
            else: n = self._n_after(self.vm, vm)
            if n is not None:
                n = min(n, 63); parts.append(f"vmcnt({n})"); self.vm = self.vm[len(self.vm) - n:] if n else []
        if lg is not None:
            if lg == "all": n = 0 if self.lg else None
            else: n = self._n_after(self.lg, lg)
            if n is not None:
                n = min(n, 15); parts.append(f"lgkmcnt({n})"); self.lg = self.lg[len(self.lg) - n:] if n else []
        if parts:
            self.I("s_waitcnt " + " ".join(parts))

    def wait_smem(self):
        self.I("s_waitcnt lgkmcnt(0)"); self.lg = []

    stamps_on = False
    nst = 0
    def stamp(self):
        if not self.stamps_on: return
        self.I(f"s_memrealtime s[{64+2*self.nst}:{65+2*self.nst}]"); self.nst += 1
        assert self.nst <= 19

    def stamps_out(self, region, wsbase):
        if not self.stamps_on: return
        self.stamp()
        self.I("s_waitcnt lgkmcnt(0) vmcnt(0)")
        self.stamp()
        self.I("s_waitcnt lgkmcnt(0)")
        self.I(f"s_mov_b64 exec, 1\ns_lshl_b32 s60, s2, 9\ns_lshl_b32 s61, s{self.sW}, 7\ns_add_u32 s60, s60, s61\ns_add_u32 s60, s60, {(20<<20) + region*131072}\nv_mov_b32 v0, s60")
        for i in range(self.nst):
            self.I(f"v_mov_b32 v1, s{64+2*i}\nglobal_store_dword v0, v1, s[{wsbase}:{wsbase+1}] offset:{4*i}\ns_nop 1")
        self.nst = 0

    def flush_hazards(self, n=16):
        self.I(f"s_nop {n-1}")

    def text(self):
        return "\n".join(self.lines) + "\n"


def vr(b, n=1, k="v"):
    return f"{k}{b}" if n == 1 else f"{k}[{b}:{b+n-1}]"


def ar(b, n=1):
    return vr(b, n, "a")


def sr(b, n=1):
    return vr(b, n, "s")
```

```python
import sys, struct, copy
from asmlib import *

NAME = "recurrent_scan__ssm_conv_s4d__dense_activation_silu__prompt"
KN = NAME + "_kernel"
WS_H, WS_UT, WS_S = 0, 8 << 20, 10 << 20
WS_ST = 12 << 20
WS_UF = WS_ST + (64 << 10)
WS_HF = WS_ST + (128 << 10)
WS_SF = WS_ST + (256 << 10)
WS_E = WS_ST + (512 << 10)
WS_BYTES = 13 << 20
LOG2E = 0x3FB8AA3B
INV2PI = 0x3E22F983
SLOT = 32768
POLL_MAX = 20000


def fl(p): return f"{struct.unpack('<I', struct.pack('<f', float(p)))[0]:#x}"


a = Asm()
a.stamps_on = len(sys.argv) > 2
I = a.I


def srd(d, base, nbytes):
    I(f"s_mov_b32 s{d}, s{base}\ns_and_b32 s{d+1}, s{base+1}, 0xffff\ns_mov_b32 s{d+2}, {nbytes:#x}\ns_mov_b32 s{d+3}, 0x20000")


def bf16r(d, s):
    I(f"v_cvt_pk_bf16_f32 v{d}, v{s}, v{s}\nv_and_b32 v{d}, 0xffff0000, v{d}")


def wave_sum(v, sdst):
    for sh in (1, 2, 4, 8):
        I(f"v_add_f32_dpp v{v}, v{v}, v{v} row_shr:{sh} row_mask:0xf bank_mask:0xf bound_ctrl:0")
    I(f"v_add_f32_dpp v{v}, v{v}, v{v} row_bcast:15 row_mask:0xa bank_mask:0xf")
    I(f"v_add_f32_dpp v{v}, v{v}, v{v} row_bcast:31 row_mask:0xc bank_mask:0xf")
    I(f"v_readlane_b32 s{sdst}, v{v}, 63")


npoll = [0]
def poll_check(load_txt, cmp_regs, tag):
    n = npoll[0]; npoll[0] += 1
    a.wait(vm=tag)
    I(f"s_mov_b32 s{sT0}, 0")
    a.label(f"Lpoll{n}")
    I(f"v_cmp_ne_u32 vcc, s{sNON}, v{cmp_regs[0]}")
    for r in cmp_regs[1:]:
        I(f"v_cmp_ne_u32 s[{sT2}:{sT2+1}], s{sNON}, v{r}\ns_or_b64 vcc, vcc, s[{sT2}:{sT2+1}]")
    I(f"s_cbranch_vccz Lpok{n}")
    I(f"s_add_u32 s{sT0}, s{sT0}, 1\ns_cmp_gt_u32 s{sT0}, {POLL_MAX}\ns_cbranch_scc1 Lpok{n}")
    sv = list(a.vm)
    I(load_txt)
    I("s_waitcnt vmcnt(0)")
    a.vm = sv
    I(f"s_branch Lpoll{n}")
    a.label(f"Lpok{n}")


SX, SW1, SW2, SWS, SO = 32, 36, 40, 44, 48
sW, sXC, sIDX, sBI, sBJ, sLB, sTI, sDJ = 52, 53, 54, 55, 56, 57, 58, 59
sNON, sT0, sT1, sT2 = 60, 61, 3, 62
sXo, sWo, sMx, sMw, sW2o, sD, sUS = 4, 5, 16, 17, 18, 19, 20
sEX = 22
sA, sB, sC, sE_, sF, sG = 24, 25, 26, 27, 30, 31
a.sW = sW

a.raw('.amdgcn_target "amdgcn-amd-amdhsa--gfx950"')
a.raw(f".text\n.globl {KN}\n.p2align 8\n.type {KN},@function\n{KN}:")
I("s_cmp_ge_u32 s2, 256\ns_cbranch_scc1 Lend")
a.stamp()
I("s_load_dwordx16 s[4:19], s[0:1], 0\ns_load_dwordx8 s[20:27], s[0:1], 64\ns_load_dwordx2 s[28:29], s[0:1], 96")
I("s_getpc_b64 s[30:31]")
a.label("Lpc")
I("v_lshlrev_b32 v2, 7, v0\nv_min_u32 v2, Lend-Lpc, v2\nglobal_load_dword v3, v2, s[30:31]", vm="code")
vL, vL16 = 1, 2
I(f"v_and_b32 v{vL}, 63, v0\nv_lshrrev_b32 v4, 6, v0")
I(f"v_readfirstlane_b32 s{sW}, v4")
I(f"s_and_b32 s{sXC}, s2, 7\ns_lshr_b32 s{sIDX}, s2, 3")
I(f"s_lshl_b32 s{sLB}, s{sXC}, 5\ns_add_u32 s{sLB}, s{sLB}, s{sIDX}")
I(f"s_lshr_b32 s{sBI}, s{sXC}, 1\ns_lshl_b32 s{sBI}, s{sBI}, 2\ns_and_b32 s{sT1}, s{sIDX}, 3\ns_add_u32 s{sBI}, s{sBI}, s{sT1}")
I(f"s_lshl_b32 s{sTI}, s{sXC}, 2\ns_add_u32 s{sTI}, s{sTI}, s{sT1}")
I(f"s_lshr_b32 s{sDJ}, s{sIDX}, 2\ns_and_b32 s{sBJ}, s{sXC}, 1\ns_lshl_b32 s{sBJ}, s{sBJ}, 3\ns_add_u32 s{sBJ}, s{sBJ}, s{sDJ}")
I(f"v_lshlrev_b32 v{vL16}, 4, v{vL}")
I(f"s_lshl_b32 s{sT0}, s{sLB}, 9\ns_lshr_b32 s{sT1}, s{sW}, 1\ns_lshl_b32 s{sT1}, s{sT1}, 7\ns_add_u32 s{sT0}, s{sT0}, s{sT1}")
I(f"v_lshl_add_u32 v4, v{vL}, 1, s{sT0}\nv_xor_b32 v5, 128, v4")
I(f"s_lshl_b32 s{sT0}, s{sLB}, 3\ns_add_u32 s{sT0}, s{sT0}, s{sW}\ns_lshl_b32 s{sT1}, s{sT0}, 10\nv_add_u32 v6, s{sT1}, v{vL16}")
I(f"v_mov_b32 v7, {WS_E:#x}\ns_lshl_b32 s{sT2}, s{sLB}, 2")
a.wait_smem()
vP = 40
I(f"global_load_dwordx4 v[48:51], v6, s[4:5]", vm="row")
I(f"global_load_dword v46, v7, s[28:29] sc1", vm="row")
for i in range(4): I(f"global_load_ushort v{vP+i}, v4, {sr(6+2*i,2)}", vm="par")
I(f"global_load_ushort v{vP+4}, v5, s[10:11]\nglobal_load_ushort v{vP+5}, v5, s[12:13]", vm="par")
I(f"s_load_dword s{sF}, s[14:15], s{sT2}\ns_load_dword s{sG}, s[16:17], s{sT2}")
srd(SX, 4, 2048 * 512 * 2); srd(SW1, 20, 512 * 1792 * 2)
vXo, vWo, vW2o = 8, 10, 11
I(f"v_lshrrev_b32 v12, 3, v{vL}\nv_and_b32 v13, 7, v{vL}\nv_lshrrev_b32 v14, 4, v{vL}")
I(f"v_xor_b32 v15, v13, v14\nv_lshlrev_b32 v{vXo}, 10, v12\nv_lshl_add_u32 v{vXo}, v15, 4, v{vXo}")
I(f"v_xor_b32 v{vXo+1}, 64, v{vXo}\nv_add_u32 v{vXo+1}, 8192, v{vXo+1}")
I(f"v_mul_u32_u24 v15, 37, v{vL}\nv_lshrrev_b32 v15, 9, v15\nv_mul_u32_u24 v16, 14, v15\nv_sub_u32 v16, v{vL}, v16")
I(f"v_mul_u32_u24 v{vWo}, 3584, v15\nv_lshl_add_u32 v{vWo}, v16, 4, v{vWo}")
a.wait_smem()
I(f"s_lshl_b32 s{sXo}, s{sBI}, 17\ns_lshl_b32 s{sT1}, s{sW}, 14\ns_add_u32 s{sXo}, s{sXo}, s{sT1}")
I(f"s_lshr_b32 s{sT1}, s{sW}, 1\ns_lshl_b32 s{sT1}, s{sT1}, 4\ns_and_b32 s{sT0}, s{sW}, 1\ns_lshl_b32 s{sT0}, s{sT0}, 2\ns_add_u32 s{sT1}, s{sT1}, s{sT0}")
I(f"s_mul_i32 s{sWo}, s{sT1}, 3584\ns_mul_i32 s{sT1}, s{sBJ}, 224\ns_add_u32 s{sWo}, s{sWo}, s{sT1}")
I(f"s_lshl_b32 s{sMx}, s{sW}, 11\ns_mul_i32 s{sMw}, s{sW}, {8*224}")
srd(SW2, 22, 1792 * 512 * 2); srd(SO, 24, 2048 * 512 * 2); srd(SWS, 28, WS_BYTES)
I(f"s_mov_b32 s{sEX}, -1\ns_mov_b32 s{sEX+1}, 0x00ffffff")


def dma_chunk(c):
    sb = (c % 5) * SLOT
    I(f"s_add_u32 s{sT1}, s{sXo}, {c*128}")
    for i in range(2):
        I(f"s_add_u32 m0, s{sMx}, {sb + i*1024}")
        I(f"buffer_load_dwordx4 v{vXo+i}, {sr(SX,4)}, s{sT1} offen lds", vm=("ch", c))
    I(f"s_mov_b64 exec, s[{sEX}:{sEX+1}]")
    for g0 in range(2):
        I(f"s_add_u32 m0, s{sMw}, {sb + 16384 + g0*896}\ns_add_u32 s{sT1}, s{sWo}, {(64*c + 8*g0)*3584}")
        I(f"buffer_load_dwordx4 v{vWo}, {sr(SW1,4)}, s{sT1} offen lds", vm=("ch", c))
    I("s_mov_b64 exec, -1")


for c in range(3): dma_chunk(c)
I(f"v_mul_u32_u24 v17, 3584, v15\nv_lshl_add_u32 v17, v16, 7, v17")
I(f"s_lshl_b32 s{sT0}, s{sIDX}, 4\ns_and_b32 s{sT1}, s{sW}, 3\ns_lshl_b32 s{sT1}, s{sT1}, 2\ns_add_u32 s{sT0}, s{sT0}, s{sT1}\ns_mul_i32 s{sT0}, s{sT0}, 3584")
I(f"s_and_b32 s{sT1}, s{sXC}, 1\ns_mul_i32 s{sT1}, s{sT1}, 1792\ns_add_u32 s{sT0}, s{sT0}, s{sT1}")
I(f"v_lshlrev_b32 v18, 7, v{vL}\ns_xor_b32 s{sT1}, s{sLB}, 32\ns_lshl_b32 s{sT1}, s{sT1}, 13")
I(f"s_cmp_ge_u32 s{sW}, 4\ns_cbranch_scc1 Lpf1")
I(f"buffer_load_dword v3, v17, {sr(SW1,4)}, s{sT0} offen", vm="pf")
I(f"s_branch Lpf2")
a.label("Lpf1")
a.vm.pop()
I(f"buffer_load_dword v3, v18, {sr(SX,4)}, s{sT1} offen", vm="pf")
a.label("Lpf2")
a.stamp()
I(f"v_lshlrev_b32 v15, 1, v14\nv_xor_b32 v15, v13, v15\nv_lshlrev_b32 v{vW2o}, 10, v12\nv_lshl_add_u32 v{vW2o}, v15, 4, v{vW2o}")
I(f"s_mul_i32 s{sW2o}, s{sW}, {224*1024}\ns_lshl_b32 s{sT1}, s{sDJ}, 7\ns_add_u32 s{sW2o}, s{sW2o}, s{sT1}")
L_KC = 30720
vG = 20
I(f"v_and_b32 v15, 255, v0\nv_lshlrev_b32 v15, 3, v15\nv_sub_u32 v15, 2047, v15")
I(f"v_cmp_gt_u32 vcc, 200, v15")
I(f"s_lshr_b32 s{sC}, s{sW}, 2\ns_lshl_b32 s{sA}, s{sC}, 15\ns_add_u32 s{sA}, s{sA}, {L_KC}")
for e in range(11):
    I(f"v_subrev_u32 v16, {e}, v15\nv_cvt_f32_u32 v17, v16\nv_cvt_pk_bf16_f32 v17, v17, v17\nv_and_b32 v17, 0xffff, v17\nv_subrev_u32 v17, 0x4280, v17")
    I(f"v_cndmask_b32 v16, v17, v16, vcc")
    if e >= 8: I(f"v_min_u32 v16, 770, v16")
    I(f"v_lshl_add_u32 v{vG+e}, v16, 1, s{sA}")
I(f"v_and_b32 v15, 15, v{vL}\ns_and_b32 s{sT0}, s{sW}, 1\ns_lshl_b32 s{sT0}, s{sT0}, 4\nv_add_u32 v16, s{sT0}, v15")
I(f"s_mov_b32 s{sT2}, 0\ns_mov_b32 s{sT2+1}, 0x0000ffff")
I(f"v_lshlrev_b32 v17, 3, v16\nv_lshl_add_u32 v17, v14, 2, v17")
I(f"v_lshlrev_b32 v18, 2, v16\nv_add_u32 v18, 256, v18\nv_cndmask_b32 v17, v17, v18, s[{sT2}:{sT2+1}]")
I(f"s_mov_b32 s{sT2+1}, 0xffff0000")
I(f"v_lshlrev_b32 v18, 1, v16\nv_add_u32 v18, 384, v18\nv_cndmask_b32 v17, v17, v18, s[{sT2}:{sT2+1}]")
I(f"v_mov_b32 v18, 2\nv_mov_b32 v19, 64\nv_cndmask_b32 v18, v18, v19, s[{sT2}:{sT2+1}]")
I(f"v_min_u32 v19, 1, v14\nv_lshl_add_u32 v19, v19, 7, v16\nv_add_u32 v19, 512, v19")
I(f"s_bitcmp1_b32 s{sW}, 1\ns_cselect_b64 vcc, -1, 0\ns_cselect_b32 s{sT0}, 32, 1")
I(f"v_mov_b32 v31, 64\nv_cndmask_b32 v17, v17, v19, vcc\nv_cndmask_b32 v18, v18, v31, vcc")
I(f"v_lshl_add_u32 v32, v17, 1, s{sA}\ns_lshl_b32 s{sT0}, s{sT0}, 1\nv_add_u32 v33, s{sT0}, v32\nv_lshl_add_u32 v34, v18, 1, v32\nv_add_u32 v35, s{sT0}, v34")
I(f"v_mov_b32 v16, s{sA}\nv_mov_b32 v17, 0\nds_write_b32 v16, v17 offset:{770*2}")
RP = 528
L_ST = 3 * SLOT
STC = 53 * RP
L_LN = L_ST + 2 * STC
LNP = 1088
assert L_LN % 16 == 0 and L_LN + 8 * LNP <= 5 * SLOT
I(f"s_mul_i32 s{sB}, s{sC}, {STC}\ns_add_u32 s{sB}, s{sB}, {L_ST}")
I(f"s_lshr_b32 s{sT0}, s{sW}, 1\ns_and_b32 s{sT0}, s{sT0}, 1\ns_lshl_b32 s{sT1}, s{sT0}, 8\ns_add_u32 s{sT1}, s{sT1}, s{sB}\nv_lshl_add_u32 v36, v{vL}, 2, s{sT1}")
I(f"s_lshl_b32 s{sT0}, s{sT0}, 4\nv_add_u32 v16, s{sT0}, v15\nv_min_u32 v16, 20, v16\nv_mul_u32_u24 v16, {RP}, v16\nv_lshl_add_u32 v16, v14, 4, v16\nv_add_u32 v37, s{sB}, v16")
I(f"s_and_b32 s{sT0}, s{sW}, 1\ns_lshl_b32 s{sT0}, s{sT0}, 4\ns_add_u32 s{sT0}, s{sT0}, 21\nv_add_u32 v16, s{sT0}, v15\nv_mul_u32_u24 v16, {RP}, v16\nv_lshl_add_u32 v16, v14, 4, v16\nv_add_u32 v38, s{sB}, v16")
I(f"s_mul_i32 s{sT0}, s{sW}, {LNP}\ns_add_u32 s{sT0}, s{sT0}, {L_LN}\nv_add_u32 v39, s{sT0}, v{vL16}")
I(f"v_bfe_u32 v16, v{vL}, 2, 2\nv_mul_u32_u24 v16, {LNP}, v16\nv_lshl_add_u32 v16, v14, 5, v16\nv_and_b32 v17, 3, v{vL}\nv_lshl_add_u32 v16, v17, 3, v16")
I(f"s_lshl_b32 s{sT0}, s{sW}, 7\ns_add_u32 s{sT0}, s{sT0}, {L_LN}\nv_add_u32 v47, s{sT0}, v16")
I(f"s_lshl_b32 s{sT0}, s{sC}, 4\ns_lshr_b32 s{sF}, s{sF}, s{sT0}\ns_lshl_b32 s{sF}, s{sF}, 16\ns_lshr_b32 s{sD}, s{sG}, s{sT0}\ns_lshl_b32 s{sD}, s{sD}, 16")
I(f"s_mov_b32 s{sG}, {LOG2E:#x}\nv_mov_b32 v52, s{sF}\nv_mul_f32 v52, s{sG}, v52\nv_exp_f32 v52, v52")
bf16r(52, 52)
a.wait(vm="row")
a.stamp()
I(f"v_readfirstlane_b32 s{sNON}, v46")
I(f"s_mul_i32 s{sNON}, s{sNON}, 0x9E3779B1\ns_add_u32 s{sNON}, s{sNON}, 0x7F4A7C15")
for j in range(4):
    I(f"v_lshlrev_b32 v{56+2*j}, 16, v{48+j}\nv_and_b32 v{57+2*j}, 0xffff0000, v{48+j}")
I("v_pk_add_f32 v[64:65], v[56:57], v[58:59]\nv_pk_add_f32 v[66:67], v[60:61], v[62:63]\nv_pk_add_f32 v[64:65], v[64:65], v[66:67]\nv_add_f32 v64, v64, v65")
wave_sum(64, sT0)
I(f"v_mov_b32 v64, s{sT0}\nv_mul_f32 v64, {fl(-1/512)}, v64")
for j in range(4): I(f"v_pk_add_f32 {vr(66+2*j,2)}, {vr(56+2*j,2)}, v[64:65] op_sel_hi:[1,0]")
I("v_pk_mul_f32 v[74:75], v[66:67], v[66:67]")
for j in range(1, 4): I(f"v_pk_fma_f32 v[74:75], {vr(66+2*j,2)}, {vr(66+2*j,2)}, v[74:75]")
I("v_add_f32 v74, v74, v75")
wave_sum(74, sT0)
I(f"v_mov_b32 v74, s{sT0}\nv_mul_f32 v74, {fl(1/512)}, v74")
bf16r(74, 74)
I(f"v_add_f32 v74, 0x3727c5ac, v74")
bf16r(74, 74)
I("v_sqrt_f32 v74, v74")
I("v_cvt_pk_bf16_f32 v76, v64, v74")
I("v_lshlrev_b32 v64, 16, v76\nv_and_b32 v74, 0xffff0000, v76\nv_rcp_f32 v74, v74")
I(f"v_mov_b32 v77, s{sNON}\ns_lshl_b32 s{sT0}, s{sLB}, 3\ns_add_u32 s{sT0}, s{sT0}, s{sW}\ns_lshl_b32 s{sT0}, s{sT0}, 3\ns_add_u32 s{sT0}, s{sT0}, {WS_ST}\nv_mov_b32 v78, 0")
I(f"s_mov_b64 exec, 1\nbuffer_store_dwordx2 v[76:77], v78, {sr(SWS,4)}, s{sT0} offen sc1\ns_mov_b64 exec, -1", vm="stat")
for j in range(4):
    I(f"v_pk_add_f32 {vr(56+2*j,2)}, {vr(56+2*j,2)}, v[64:65] op_sel_hi:[1,0]")
    I(f"v_cvt_pk_bf16_f32 v{48+j}, v{56+2*j}, v{57+2*j}")
    I(f"v_lshlrev_b32 v{56+2*j}, 16, v{48+j}\nv_and_b32 v{57+2*j}, 0xffff0000, v{48+j}")
    I(f"v_pk_mul_f32 {vr(56+2*j,2)}, {vr(56+2*j,2)}, v[74:75] op_sel_hi:[1,0]")
    I(f"v_cvt_pk_bf16_f32 v{48+j}, v{56+2*j}, v{57+2*j}")
I("ds_write_b128 v39, v[48:51]")
a.wait(vm="par")
for i in range(6): I(f"v_lshlrev_b32 v{vP+i}, 16, v{vP+i}")
I(f"v_mul_f32 v40, s{sG}, v40\nv_exp_f32 v40, v40")
bf16r(40, 40)
I(f"v_mul_f32 v40, v40, v52\nv_mul_f32 v40, s{sG}, v40\nv_xor_b32 v40, 0x80000000, v40")
I(f"v_mul_f32 v41, v41, v52\nv_mul_f32 v41, {INV2PI:#x}, v41")
I(f"v_max_f32 v53, |v42|, |v43|\nv_max3_f32 v53, |v44|, |v45|, v53\nv_mul_f32 v53, v53, v52")
for sh in (1, 2, 4, 8):
    I(f"v_max_f32_dpp v53, v53, v53 row_shr:{sh} row_mask:0xf bank_mask:0xf")
I(f"v_max_f32_dpp v53, v53, v53 row_bcast:15 row_mask:0xa bank_mask:0xf\nv_max_f32_dpp v53, v53, v53 row_bcast:31 row_mask:0xc bank_mask:0xf")
I(f"v_readlane_b32 s{sT0}, v53, 63")
I(f"s_lshr_b32 s{sT0}, s{sT0}, 23\ns_max_u32 s{sT0}, s{sT0}, 2\ns_min_u32 s{sT0}, s{sT0}, 250")
I(f"s_sub_u32 s{sT1}, 253, s{sT0}\ns_lshl_b32 s{sT1}, s{sT1}, 23\ns_add_u32 s{sUS}, s{sT0}, 2\ns_lshl_b32 s{sUS}, s{sUS}, 23")


def cexp(d, p):
    I(f"v_mul_f32 v54, {fl(p)}, v40\nv_mul_f32 v55, {fl(p)}, v41\nv_exp_f32 v54, v54\nv_fract_f32 v55, v55")
    I(f"v_cos_f32 v{d}, v55\nv_sin_f32 v{d+1}, v55")
    I(f"v_mul_f32 v{d}, v{d}, v54\nv_mul_f32 v{d+1}, v{d+1}, v54")

def cmul(d, x, y):
    I(f"v_pk_mul_f32 {vr(d,2)}, {vr(x,2)}, {vr(y,2)} op_sel:[0,0] op_sel_hi:[0,1]")
    I(f"v_pk_fma_f32 {vr(d,2)}, {vr(x,2)}, {vr(y,2)}, {vr(d,2)} op_sel:[1,1,0] op_sel_hi:[1,0,1] neg_lo:[0,1,0]")

tmpc = [0]
def put(row, src, neg):
    t = 56 + (tmpc[0] % 8); tmpc[0] += 1
    I(f"v_cvt_pk_f16_f32 v{t}, v{src}, {'-' if neg else ''}v{src+1}")
    I(f"ds_write_b32 v36, v{t} offset:{row*RP}")

I(f"s_bitcmp1_b32 s{sW}, 0\ns_cbranch_scc1 Lkg1")
hist0 = list(a.hist)
E1, E256 = 64, 66
X = lambda i: 70 + 2 * i
Y = lambda c: 112 + 2 * c
I(f"v_mul_f32 v52, s{sT1}, v52\nv_mul_f32 v{X(0)}, v42, v52\nv_mul_f32 v{X(0)+1}, v43, v52")
cexp(E1, 1); cexp(Y(1), 8); cexp(E256, 256)
I(f"v_mov_b32 v63, 0x3c00\nds_write_b32 v36, v63 offset:{21*RP}")
put(0, X(0), True); put(22, Y(1), False)
xs = [(1, 0, E1), (8, 0, E256), (2, 1, E1), (12, 8, E256), (3, 2, E1), (9, 2, E256), (14, 12, E256), (4, 3, E1), (16, 14, E256), (5, 4, E1), (10, 4, E256),
      (17, 16, E256), (6, 5, E1), (13, 10, E256), (18, 17, E256), (7, 6, E1), (11, 6, E256), (15, 13, E256), (19, 18, E256), (20, 19, E256)]
ys = [(c, c - 1, Y(1)) for c in range(2, 6)]
seq = []
for i, x_ in enumerate(xs):
    seq.append(("x",) + x_)
    if i % 5 == 4: seq.append(("y",) + ys[i // 5])
pend = None
for k_, d, s_, e in seq:
    if k_ == "x": cmul(X(d), X(s_), e); nxt = (d, X(d), True)
    else: cmul(Y(d), Y(s_), e); nxt = (21 + d, Y(d), False)
    if pend: put(*pend)
    pend = nxt
put(*pend)
I("s_branch Lkg2")
a.label("Lkg1")
a.hist = list(hist0)
E16 = 64
Y2 = lambda c: 70 + 2 * (c - 6)
cexp(Y2(6), 48); cexp(Y2(7), 56); cexp(E16, 16)
put(27, Y2(6), False)
pend = (28, Y2(7), False)
for c in range(8, 32):
    cmul(Y2(c), Y2(c - 2), E16)
    put(*pend); pend = (21 + c, Y2(c), False)
put(*pend)
a.label("Lkg2")
a.lg.append("x")
a.wait(lg="all"); I("s_barrier")
a.stamp()
I(f"ds_read_b64_tr_b16 v[48:49], v47\nds_read_b64_tr_b16 v[50:51], v47 offset:{4*LNP}", lg="ln")
vFA, vFB, vD = 56, 88, 120
for ks in range(8):
    I(f"ds_read_b128 {vr(vFA+4*ks,4)}, v37 offset:{ks*64}", lg=("k", ks))
    I(f"ds_read_b128 {vr(vFB+4*ks,4)}, v38 offset:{ks*64}", lg=("k", ks))
    if ks == 2:
        I(f"s_lshl_b32 s{sT0}, s{sLB}, 13\ns_lshl_b32 s{sT1}, s{sW}, 10\ns_add_u32 s{sT0}, s{sT0}, s{sT1}\ns_add_u32 s{sT0}, s{sT0}, {WS_UT}")
        a.wait(lg="ln")
        I(f"buffer_store_dwordx4 v[48:51], v{vL16}, {sr(SWS,4)}, s{sT0} offen sc1", vm="ust")
for ks in range(8):
    a.wait(lg=("k", ks))
    I(f"v_mfma_f32_16x16x32_f16 {vr(vD,4)}, {vr(vFA+4*ks,4)}, {vr(vFB+4*ks,4)}, {vr(vD,4) if ks else 0}")
for r in range(4): I(f"v_mul_f32 v{vD+r}, s{sUS}, v{vD+r}")
I(f"v_cvt_pk_bf16_f32 v{vD}, v{vD}, v{vD+1}\nv_cvt_pk_bf16_f32 v{vD+1}, v{vD+2}, v{vD+3}")
I(f"ds_write_b16 v32, v{vD}\nds_write_b16_d16_hi v33, v{vD}\nds_write_b16 v34, v{vD+1}\nds_write_b16_d16_hi v35, v{vD+1}")
a.wait(lg="all"); I("s_barrier")
a.stamp()
dma_chunk(3); dma_chunk(4)
vK = 32
for e in range(11):
    I(f"ds_read_u16 v{(vK + e//2) if e % 2 == 0 else (56 + e//2)}, v{vG+e}", lg="kg")
I(f"v_lshlrev_b32 v15, 7, v{vL}\ns_mul_i32 s{sT0}, s{sIDX}, {56*1024}\ns_min_u32 s{sT1}, s{sW}, 6\ns_lshl_b32 s{sT1}, s{sT1}, 13\ns_add_u32 s{sT0}, s{sT0}, s{sT1}")
I(f"buffer_load_dword v3, v15, {sr(SW2,4)}, s{sT0} offen", vm="pf2")
vXr, vWr, vCr = 12, 14, 15
vW2r = 20
vONE = 24
vSTA = 28
vSo = 17
a.wait(lg="all")
for j in range(5): I(f"v_lshl_or_b32 v{vK+j}, v{56+j}, 16, v{vK+j}")
I(f"v_and_b32 v40, 15, v{vL}\nv_lshrrev_b32 v41, 4, v{vL}\nv_lshrrev_b32 v42, 1, v40\nv_xor_b32 v42, v41, v42")
I(f"v_lshlrev_b32 v{vXr}, 7, v40\nv_lshl_add_u32 v{vXr}, v42, 4, v{vXr}\ns_and_b32 s{sA}, s{sW}, 3\ns_lshl_b32 s{sT0}, s{sA}, 12\nv_add_u32 v{vXr}, s{sT0}, v{vXr}\nv_xor_b32 v{vXr+1}, 64, v{vXr}")
I(f"v_lshrrev_b32 v43, 5, v{vL}\nv_lshlrev_b32 v43, 4, v43\nv_bfe_u32 v44, v{vL}, 4, 1\nv_lshl_add_u32 v43, v44, 2, v43\nv_bfe_u32 v44, v{vL}, 2, 2\nv_add_u32 v43, v43, v44")
I(f"v_mul_u32_u24 v43, 224, v43\nv_and_b32 v45, 3, v{vL}\nv_lshl_add_u32 v43, v45, 3, v43\nv_add_u32 v43, 16384, v43")
I(f"s_lshl_b32 s{sT0}, s{sC}, 7\nv_add_u32 v{vWr}, s{sT0}, v43")
I(f"s_lshl_b32 s{sT0}, s{sA}, 6\nv_add_u32 v{vCr}, s{sT0}, v43\ns_add_u32 s{sT0}, s{sT0}, 32\ns_min_u32 s{sT0}, s{sT0}, 192\nv_add_u32 v{vCr+1}, s{sT0}, v43")
I(f"v_lshl_add_u32 v46, v41, 2, v44\nv_lshrrev_b32 v47, 1, v46\nv_and_b32 v47, 3, v47\nv_lshlrev_b32 v48, 3, v45\nv_lshl_add_u32 v48, v46, 7, v48\ns_lshl_b32 s{sT0}, s{sW}, 12\nv_add_u32 v48, s{sT0}, v48")
for dt in range(4): I(f"v_xor_b32 v49, {dt}, v47\nv_lshl_add_u32 v{vW2r+dt}, v49, 5, v48")
for i in range(4): I(f"v_mov_b32 v{vONE+i}, 0x3f803f80")
I(f"s_lshl_b32 s{sT0}, s{sBI}, 10\ns_lshl_b32 s{sT1}, s{sA}, 8\ns_add_u32 s{sT0}, s{sT0}, s{sT1}\ns_add_u32 s{sT0}, s{sT0}, {WS_ST}\nv_lshl_add_u32 v{vSo}, v40, 3, s{sT0}")
a.wait(vm="ust")
I(f"s_lshl_b32 s{sT0}, s{sW}, 10\ns_lshl_b32 s{sT1}, s{sLB}, 2\ns_add_u32 s{sT0}, s{sT0}, s{sT1}\ns_add_u32 s{sT0}, s{sT0}, {WS_UF}\nv_mov_b32 v40, 0\nv_mov_b32 v41, s{sNON}")
I(f"s_mov_b64 exec, 1\nbuffer_store_dword v41, v40, {sr(SWS,4)}, s{sT0} offen sc1\ns_mov_b64 exec, -1", vm="uf")

W2P = [3 * SLOT, 4 * SLOT, 0]
def w2rows(u, i):
    h = i >> 1
    if u < 3: base = 32 * u + 16 * h
    elif u < 6: base = 112 + 32 * (u - 3) + 16 * h
    else: base = 96 if h == 0 else 208
    return base + 8 * (i & 1)

def w2dma(u):
    I(f"s_lshl_b32 s{sT0}, s{sW}, 12")
    for i in range(4):
        I(f"s_add_u32 m0, s{sT0}, {W2P[u%3] + i*1024}\ns_add_u32 s{sT1}, s{sW2o}, {w2rows(u,i)*1024}")
        I(f"buffer_load_dwordx4 v{vW2o}, {sr(SW2,4)}, s{sT1} offen lds", vm=("w2", u))

w2base = [0]
def w2read(u):
    a.wait(vm=("w2", u))
    want = 0 if u % 3 == 2 else 3 * SLOT
    if want != w2base[0]:
        for dt in range(4): I(f"v_add_u32 v{vW2r+dt}, {(want - w2base[0]) & 0xffffffff:#x}, v{vW2r+dt}")
        w2base[0] = want
    for dt in range(4):
        for h in range(2):
            I(f"ds_read_b64_tr_b16 {ar((u*4+dt)*4+2*h,2)}, v{vW2r+dt} offset:{W2P[u%3] - want + h*2048}", lg=("w2r", u))

def w2next(u):
    if u + 3 < 7:
        a.wait(lg=("w2r", u)); w2dma(u + 3)

vACC = 40
vXF = 72
vWF = 88
L_CS = 2 * SLOT + 30720
L_KR = SLOT; CP = 4160
L_U = L_KR + 8 * CP; UP = 4608

def gemm1_path(grp):
    nt = 4 if grp == 0 else 3
    addr_regs = [vXr, vXr + 1, vWr] + ([vCr, vCr + 1] if grp else [])
    cur = [0]
    def reads(ks):
        c, kk = ks >> 1, ks & 1
        sb = (c % 5) * SLOT
        out = []
        if kk == 0 and c > 0:
            want = (sb >> 16) << 16
            if want != cur[0]:
                d = (want - cur[0]) & 0xffffffff
                for r in addr_regs: out.append((f"v_add_u32 v{r}, {d:#x}, v{r}", None))
                cur[0] = want
        o = sb - cur[0]
        xb = vXF + (ks & 1) * 8; wb = vWF + (ks & 1) * 20
        for T in range(2): out.append((f"ds_read_b128 {vr(xb+4*T,4)}, v{vXr+kk} offset:{o + T*2048}", ("x", ks)))
        for s in range(nt):
            for h in range(2):
                out.append((f"ds_read_b64_tr_b16 {vr(wb+4*s+2*h,2)}, v{vWr} offset:{o + (32*kk+8*h)*224 + 32*s}", ("f", ks, s)))
        if grp:
            for s in range(2):
                for h in range(2):
                    out.append((f"ds_read_b64_tr_b16 {vr(wb+12+4*s+2*h,2)}, v{vCr+s} offset:{o + (32*kk+8*h)*224}", ("f", ks, 3 + s)))
        return out
    a.wait(vm=("ch", 0)); I("s_barrier")
    a.stamp()
    for t, tag in reads(0): I(t, lg=tag)
    for ks in range(16):
        c = ks >> 1
        if ks & 1 and ks < 15:
            a.wait(vm=("ch", c + 1)); I("s_barrier")
            if 1 <= c <= 3: dma_chunk(c + 4)
            elif c >= 4: w2dma(c - 4)
            if c == 4:
                I(f"buffer_load_dwordx2 {vr(vSTA,2)}, v{vSo}, {sr(SWS,4)}, 0 offen sc1\nbuffer_load_dwordx2 {vr(vSTA+2,2)}, v{vSo}, {sr(SWS,4)}, 0 offen offset:128 sc1", vm="sta")
        nx = reads(ks + 1) if ks < 15 else []
        xb = vXF + (ks & 1) * 8; wb = vWF + (ks & 1) * 20
        mf = []
        for s in range(nt):
            for T in range(2):
                acc = vr(vACC + (s*2+T)*4, 4)
                mf.append((f"v_mfma_f32_16x16x32_bf16 {acc}, {vr(wb+4*s,4)}, {vr(xb+4*T,4)}, {acc if ks else 0}", ("f", ks, s)))
        if grp:
            for s in range(2):
                acc = vr(vACC + 24 + 4*s, 4)
                mf.append((f"v_mfma_f32_16x16x32_bf16 {acc}, {vr(wb+12+4*s,4)}, {vr(vONE,4)}, {acc if ks else 0}", ("f", ks, 3 + s)))
        per = -(-len(nx) // 8)
        for i, (t, tag) in enumerate(mf):
            a.wait(lg=tag)
            I(t)
            for t2, tag2 in nx[i*per:(i+1)*per]: I(t2, lg=tag2)
    a.stamp()
    I(f"v_lshrrev_b32 v72, 1, v{vL}\ns_lshl_b32 s{sT0}, s{sXC}, 10\ns_lshl_b32 s{sT1}, s{sW}, 7\ns_add_u32 s{sT0}, s{sT0}, s{sT1}\ns_add_u32 s{sT0}, s{sT0}, {WS_UF}\nv_lshl_add_u32 v73, v72, 2, s{sT0}")
    upoll = f"buffer_load_dword v74, v73, {sr(SWS,4)}, 0 offen sc1"
    I(upoll, vm="upoll")
    vCS = 88
    I(f"v_lshrrev_b32 v75, 4, v{vL}\nv_lshlrev_b32 v75, 4, v75\nv_add_u32 v75, {L_CS}, v75")
    if grp:
        I(f"s_lshl_b32 s{sT0}, s{sA}, 7\nv_add_u32 v76, s{sT0}, v75")
        I(f"s_mov_b32 s{sT2}, 0x00010001\ns_mov_b32 s{sT2+1}, 0x00010001\ns_mov_b64 exec, s[{sT2}:{sT2+1}]")
        I(f"ds_write_b128 v76, {vr(vACC+24,4)}\nds_write_b128 v76, {vr(vACC+28,4)} offset:64")
        I("s_mov_b64 exec, -1")
    w2read(0)
    a.wait(lg="all"); I("s_barrier")
    for s in range(nt): I(f"ds_read_b128 {vr(vCS+4*s,4)}, v75 offset:{(4*grp+s)*64}", lg="cs")
    w2dma(3)
    spoll = f"buffer_load_dwordx2 {vr(vSTA,2)}, v{vSo}, {sr(SWS,4)}, 0 offen sc1\nbuffer_load_dwordx2 {vr(vSTA+2,2)}, v{vSo}, {sr(SWS,4)}, 0 offen offset:128 sc1"
    poll_check(spoll, [vSTA + 1, vSTA + 3], "sta")
    vR = 104
    for T in range(2):
        r = vR + 4 * T
        I(f"v_lshlrev_b32 v{r}, 16, v{vSTA+2*T}\nv_and_b32 v{r+2}, 0xffff0000, v{vSTA+2*T}\nv_rcp_f32 v{r+1}, v{r+2}")
        I(f"v_mul_f32 v{r+1}, {LOG2E | 0x80000000:#x}, v{r+1}")
    I(f"s_lshl_b32 s{sE_}, s{sBI}, 3\ns_lshl_b32 s{sT1}, s{sA}, 1\ns_add_u32 s{sE_}, s{sE_}, s{sT1}\ns_mul_i32 s{sE_}, s{sE_}, 56")
    I(f"s_lshr_b32 s{sT1}, s{sBJ}, 1\ns_mul_i32 s{sT1}, s{sT1}, 7\ns_add_u32 s{sE_}, s{sE_}, s{sT1}")
    I(f"s_and_b32 s{sF}, s{sBJ}, 1\ns_mul_i32 s{sG}, s{sF}, 3\ns_add_u32 s{sG}, s{sG}, s{sE_}\ns_lshl_b32 s{sG}, s{sG}, 10\ns_add_u32 s{sB}, s{sG}, {56*1024}")
    I(f"s_mul_i32 s{sF}, s{sF}, 56\ns_add_u32 s{sF}, s{sF}, s{sE_}\ns_add_u32 s{sF}, s{sF}, 6\ns_lshl_b32 s{sF}, s{sF}, 10")
    a.wait(lg="cs")
    a.stamp()
    vT_, vO = 112, 120

    def silu4(acc, cs, r, out, t):
        for hlf in range(2):
            A2, C2, Tm = vr(acc + 2*hlf, 2), vr(cs + 2*hlf, 2), vr(t + 2*hlf, 2)
            I(f"v_pk_fma_f32 {A2}, {C2}, {vr(r,2)}, {A2} op_sel_hi:[1,0,1]")
            I(f"v_pk_mul_f32 {Tm}, {A2}, {vr(r,2)} op_sel:[0,1] op_sel_hi:[1,1]")
        for i in range(4): I(f"v_exp_f32 v{t+i}, v{t+i}")
        for hlf in range(2):
            Tm = vr(t + 2*hlf, 2)
            I(f"v_pk_fma_f32 {Tm}, {Tm}, {vr(r+2,2)}, {vr(r+2,2)} op_sel_hi:[1,0,0]")
        for i in range(4): I(f"v_rcp_f32 v{t+i}, v{t+i}")
        for hlf in range(2):
            A2, Tm = vr(acc + 2*hlf, 2), vr(t + 2*hlf, 2)
            I(f"v_pk_mul_f32 {A2}, {A2}, {Tm}")
        for hlf in range(2):
            I(f"v_cvt_pk_bf16_f32 v{out+hlf}, v{acc+2*hlf}, v{acc+2*hlf+1}")
    ob = 0
    for p in range(2 if grp == 0 else 1):
        for T in range(2):
            o = vO + 4 * ob; ob += 1
            for s in range(2):
                silu4(vACC + ((2*p+s)*2+T)*4, vCS + (2*p+s)*4, vR + 4*T, o + 2*s, vT_ + 4*s)
            I(f"buffer_store_dwordx4 {vr(o,4)}, v{vL16}, {sr(SWS,4)}, s{sG if T == 0 else sB} offen offset:{(2*grp+p)*1024} sc1", vm="hst")
    if grp:
        o = vO + 4 * ob
        for T in range(2): silu4(vACC + (4+T)*4, vCS + 8, vR + 4*T, o + 2*T, vT_ + 4*T)
        I(f"buffer_store_dwordx4 {vr(o,4)}, v{vL16}, {sr(SWS,4)}, s{sF} offen sc1", vm="hst")
    a.stamp()
    poll_check(upoll, [74], "upoll")
    I(f"v_and_b32 v75, 1, v{vL}\nv_lshlrev_b32 v76, 13, v72\nv_lshl_add_u32 v76, v75, 4, v76")
    I(f"s_lshl_b32 s{sT0}, s{sW}, 18\ns_lshl_b32 s{sT1}, s{sLB}, 5\ns_add_u32 s{sT0}, s{sT0}, s{sT1}\ns_add_u32 s{sT0}, s{sT0}, {WS_UT}")
    I(f"buffer_load_dwordx4 v[80:83], v76, {sr(SWS,4)}, s{sT0} offen sc1", vm="u")
    w2read(1); w2read(2)
    vE = 40
    for j in range(5): I(f"v_alignbit_b32 v{vE+j}, v{vK+j+1}, v{vK+j}, 16")
    for j in range(4): I(f"v_mov_b32 v{vE+8+j}, v{vK+1+j}\nv_mov_b32 v{vE+12+j}, v{vE+1+j}")
    I(f"v_and_b32 v77, 255, v0\nv_lshlrev_b32 v77, 4, v77\ns_mul_i32 s{sT0}, s{sC}, {4*CP}\ns_add_u32 s{sT0}, s{sT0}, {L_KR}\nv_add_u32 v77, s{sT0}, v77")
    I(f"ds_write_b128 v77, {vr(vK,4)}\nds_write_b128 v77, {vr(vE,4)} offset:{CP}\nds_write_b128 v77, {vr(vE+8,4)} offset:{2*CP}\nds_write_b128 v77, {vr(vE+12,4)} offset:{3*CP}")
    I(f"v_mov_b32 v56, 0\nv_mov_b32 v57, 0\nv_mov_b32 v58, 0\nv_mov_b32 v59, 0")
    I(f"s_mul_i32 s{sT0}, s{sW}, {CP}\ns_add_u32 s{sT0}, s{sT0}, {L_KR + 4096}\nv_add_u32 v60, s{sT0}, v{vL16}")
    I(f"s_mul_i32 s{sT0}, s{sC}, {UP}\ns_lshl_b32 s{sT1}, s{sA}, 7\ns_add_u32 s{sT0}, s{sT0}, s{sT1}\ns_add_u32 s{sT0}, s{sT0}, {L_U - 64}\nv_add_u32 v61, s{sT0}, v{vL16}")
    I(f"v_cmp_gt_u32 vcc, 4, v{vL}\nv_cndmask_b32 v60, v61, v60, vcc")
    I(f"s_mov_b64 exec, 0xfff\nds_write_b128 v60, v[56:59]\ns_mov_b64 exec, -1")
    a.wait(lg=("w2r", 2))
    w2dma(4); w2dma(5)
    a.wait(vm="hst")
    I(f"s_lshl_b32 s{sT0}, s{sBI}, 1\ns_lshr_b32 s{sT1}, s{sA}, 1\ns_add_u32 s{sT0}, s{sT0}, s{sT1}\ns_lshl_b32 s{sT0}, s{sT0}, 3\ns_lshr_b32 s{sT1}, s{sBJ}, 1\ns_add_u32 s{sT0}, s{sT0}, s{sT1}\ns_lshl_b32 s{sT0}, s{sT0}, 7")
    I(f"s_and_b32 s{sT1}, s{sBJ}, 1\ns_lshl_b32 s{sT1}, s{sT1}, 4\ns_add_u32 s{sT0}, s{sT0}, s{sT1}\ns_and_b32 s{sT1}, s{sA}, 1\ns_lshl_b32 s{sT1}, s{sT1}, 2\ns_add_u32 s{sT0}, s{sT0}, s{sT1}\ns_add_u32 s{sT0}, s{sT0}, {WS_HF + 8*grp}")
    I(f"v_mov_b32 v62, 0\nv_mov_b32 v63, s{sNON}")
    I(f"s_mov_b64 exec, 1\nbuffer_store_dword v63, v62, {sr(SWS,4)}, s{sT0} offen sc1\ns_mov_b64 exec, -1", vm="hf")


I(f"s_cmp_ge_u32 s{sW}, 4\ns_cbranch_scc1 Lg1b")
st0 = (list(a.hist), list(a.vm), list(a.lg), a.nst, w2base[0])
gemm1_path(0)
I("s_branch Lg1j")
stA = (list(a.vm), list(a.lg), a.nst, w2base[0])
a.label("Lg1b")
a.hist, a.vm, a.lg, a.nst, w2base[0] = list(st0[0]), list(st0[1]), list(st0[2]), st0[3], st0[4]
gemm1_path(1)
assert stA == (list(a.vm), list(a.lg), a.nst, w2base[0]), (stA, a.vm, a.lg)
a.label("Lg1j")
a.stamp()
I(f"v_mul_u32_u24 v75, {UP}, v75\nv_lshl_add_u32 v75, v72, 4, v75\ns_lshl_b32 s{sT0}, s{sW}, 9\ns_add_u32 s{sT0}, s{sT0}, {L_U + 512}\nv_add_u32 v75, s{sT0}, v75")
vAa, vBa = 12, 13
I(f"v_and_b32 v64, 15, v{vL}\nv_lshrrev_b32 v65, 4, v{vL}\nv_not_b32 v66, v64\nv_and_b32 v66, 3, v66")
I(f"v_add_u32 v67, v64, v66\nv_lshlrev_b32 v68, 3, v65\nv_sub_u32 v67, v68, v67\nv_add_u32 v67, {2031 - 32*57}, v67\nv_lshlrev_b32 v67, 1, v67")
I(f"v_mul_u32_u24 v66, {CP}, v66\nv_add_u32 v67, v67, v66")
I(f"s_mul_i32 s{sT0}, s{sC}, {4*CP}\ns_lshl_b32 s{sT1}, s{sA}, 7\ns_sub_u32 s{sT0}, s{sT0}, s{sT1}\ns_add_u32 s{sT0}, s{sT0}, {L_KR}\nv_add_u32 v{vAa}, s{sT0}, v67")
I(f"v_lshlrev_b32 v68, 5, v64\nv_lshl_add_u32 v68, v65, 4, v68")
I(f"s_mul_i32 s{sT0}, s{sC}, {UP}\ns_sub_u32 s{sT0}, s{sT0}, s{sT1}\ns_add_u32 s{sT0}, s{sT0}, {L_U + 480 - 64}\nv_add_u32 v{vBa}, s{sT0}, v68")
a.wait(vm="u")
I("ds_write_b128 v75, v[80:83]")
a.wait(lg="all"); I("s_barrier")
a.stamp()
I(f"s_or_b32 s{sT0}, s2, s{sW}\ns_cmp_lg_u32 s{sT0}, 0\ns_cbranch_scc1 Lnoe")
sv = list(a.vm)
I(f"v_mov_b32 v62, {WS_E:#x}\ns_mov_b64 exec, 1\nbuffer_store_dword v63, v62, {sr(SWS,4)}, 0 offen sc1\ns_mov_b64 exec, -1")
a.vm = sv
I("s_waitcnt vmcnt(0)")
a.label("Lnoe")
vC = 24
FB = [56 + 4 * i for i in range(18)]
def rdA(buf, c, q1):
    off = 512 * (7 - q1) + 64 * (1 - c)
    I(f"ds_read_b64 {vr(buf,2)}, v{vAa} offset:{off}\nds_read_b64 {vr(buf+2,2)}, v{vAa} offset:{off+8}", lg=("A", c, q1))
def rdB(buf, c, m):
    I(f"ds_read_b128 {vr(buf,4)}, v{vBa} offset:{512*m + 64*(1-c)}", lg=("B", c, m))
bA = {}; bB = {}
free = list(FB)
def takeA(c, q1): b = free.pop(0); bA[(c, q1)] = b; rdA(b, c, q1)
def takeB(c, m): b = free.pop(0); bB[(c, m)] = b; rdB(b, c, m)
takeA(0, 0)
for m in range(8): takeB(0, m)
for q1 in range(1, 8): takeA(0, q1)
takeA(1, 7); takeB(1, 0)
pend = [("A", 6), ("B", 1), ("A", 5), ("B", 2), ("A", 4), ("B", 3), ("A", 3), ("B", 4), ("A", 2), ("B", 5), ("A", 1), ("B", 6), ("A", 0), ("B", 7)]
for q1 in range(8):
    for j in range(q1, 8):
        a.wait(lg=[("A", 0, q1), ("B", 0, j - q1)])
        acc = vr(vC + 4 * j, 4)
        I(f"v_mfma_f32_16x16x32_bf16 {acc}, {vr(bA[(0,q1)],4)}, {vr(bB[(0,j-q1)],4)}, {acc if q1 else 0}")
        if free and pend and j > q1:
            k_, i_ = pend.pop(0)
            (takeA if k_ == "A" else takeB)(1, i_)
    free += [bA[(0, q1)], bB[(0, 7 - q1)]]
    if q1 == 2: w2read(3)
    if q1 == 4: w2next(3)
w2read(4); w2read(5)
I(f"v_and_b32 v14, 7, v{vL}\ns_lshl_b32 s{sT0}, s{sTI}, 3\ns_add_u32 s{sT0}, s{sT0}, s{sW}\ns_lshl_b32 s{sT0}, s{sT0}, 7\ns_add_u32 s{sT0}, s{sT0}, {WS_HF}\nv_lshl_add_u32 v14, v14, 2, s{sT0}")
hpoll = f"buffer_load_dword v15, v14, {sr(SWS,4)}, 0 offen sc1"
for q1 in range(7, -1, -1):
    for j in range(q1, 8):
        while pend and ((1, q1) not in bA or (1, j - q1) not in bB):
            k_, i_ = pend.pop(0); (takeA if k_ == "A" else takeB)(1, i_)
        a.wait(lg=[("A", 1, q1), ("B", 1, j - q1)])
        acc = vr(vC + 4 * j, 4)
        I(f"v_mfma_f32_16x16x32_bf16 {acc}, {vr(bA[(1,q1)],4)}, {vr(bB[(1,j-q1)],4)}, {acc}")
        if free and pend:
            k_, i_ = pend.pop(0); (takeA if k_ == "A" else takeB)(1, i_)
    if q1 == 2: I(hpoll, vm="hpoll")
w2read(6)
a.stamp()
I(f"s_lshl_b32 s{sT0}, s{sW}, 12\ns_add_u32 s{sT0}, s{sT0}, {3*SLOT}\nv_add_u32 v16, s{sT0}, v{vL16}")
a.wait(lg="all")
for j in range(8): I(f"ds_write_b128 v16, {vr(vC+4*j,4)} offset:{(j>>2)*SLOT + (j&3)*1024}")
vH = 80; NRING = 4
I(f"s_mul_i32 s{sG}, s{sTI}, {4*56}\ns_mul_i32 s{sT1}, s{sW}, 7\ns_add_u32 s{sG}, s{sG}, s{sT1}\ns_lshl_b32 s{sG}, s{sG}, 10")
def hld(k):
    for tt in range(4):
        I(f"s_add_u32 s{sT1}, s{sG}, {(tt*56 + k)*1024}")
        I(f"buffer_load_dwordx4 {vr(vH + (k%NRING)*16 + 4*tt,4)}, v{vL16}, {sr(SWS,4)}, s{sT1} offen sc1", vm=("h", k))
poll_check(hpoll, [15], "hpoll")
a.stamp()
for k in range(NRING): hld(k)
I(f"v_lshrrev_b32 v17, 5, v{vL}\nv_bfe_u32 v18, v{vL}, 1, 4\nv_and_b32 v19, 1, v{vL}\nv_lshlrev_b32 v17, 10, v17\nv_lshl_add_u32 v17, v18, 4, v17\nv_lshl_add_u32 v17, v19, 9, v17")
I(f"s_lshr_b32 s{sT0}, s{sA}, 1\ns_lshl_b32 s{sT0}, s{sT0}, 15\ns_and_b32 s{sT1}, s{sA}, 1\ns_lshl_b32 s{sT1}, s{sT1}, 11\ns_add_u32 s{sT0}, s{sT0}, s{sT1}\ns_lshl_b32 s{sT1}, s{sC}, 14\ns_add_u32 s{sT0}, s{sT0}, s{sT1}\ns_add_u32 s{sT0}, s{sT0}, {3*SLOT}\nv_add_u32 v17, s{sT0}, v17")
I(f"s_mul_i32 s{sT0}, s{sC}, {UP}\ns_lshl_b32 s{sT1}, s{sA}, 10\ns_add_u32 s{sT0}, s{sT0}, s{sT1}\ns_add_u32 s{sT0}, s{sT0}, {L_U + 512}\nv_add_u32 v18, s{sT0}, v{vL16}")
I(f"s_lshl_b32 s{sB}, s{sLB}, 1\ns_add_u32 s{sB}, s{sB}, s{sC}\ns_lshl_b32 s{sF}, s{sB}, 12\ns_add_u32 s{sF}, s{sF}, s{sT1}\ns_add_u32 s{sF}, s{sF}, {WS_S}")
a.wait(lg="all"); I("s_barrier")
b = 24
for p in range(4):
    for e in range(2): I(f"ds_read_b128 {vr(b+8*p+4*e,4)}, v17 offset:{p*4096 + e*256}", lg="p")
I(f"ds_read_b128 {vr(b+32,4)}, v18", lg="p")
a.wait(lg="p")
for i in range(4): I(f"v_pk_add_f32 {vr(b+2*i,2)}, {vr(b+2*i,2)}, {vr(b+8+2*i,2)}\nv_pk_add_f32 {vr(b+16+2*i,2)}, {vr(b+16+2*i,2)}, {vr(b+24+2*i,2)}")
for i in range(4): I(f"v_pk_add_f32 {vr(b+2*i,2)}, {vr(b+2*i,2)}, {vr(b+16+2*i,2)}")
for i in range(4):
    I(f"v_lshlrev_b32 v{b+8}, 16, v{b+32+i}\nv_and_b32 v{b+9}, 0xffff0000, v{b+32+i}")
    I(f"v_fma_f32 v{b+2*i}, v{b+8}, s{sD}, v{b+2*i}\nv_fma_f32 v{b+2*i+1}, v{b+9}, s{sD}, v{b+2*i+1}")
    I(f"v_cvt_pk_bf16_f32 v{4+i}, v{b+2*i}, v{b+2*i+1}")
I(f"buffer_store_dwordx4 v[4:7], v{vL16}, {sr(SWS,4)}, s{sF} offen sc1", vm="sst")
a.stamp()
vAC2 = 16
SP = 144; L_S = 0
I(f"s_lshl_b32 s{sE_}, s{sA}, 9\ns_add_u32 s{sE_}, s{sE_}, s{sB}\ns_lshl_b32 s{sE_}, s{sE_}, 4\ns_add_u32 s{sE_}, s{sE_}, {WS_SF}")
I(f"v_lshrrev_b32 v8, 3, v{vL}\nv_and_b32 v9, 7, v{vL}")
I(f"s_lshl_b32 s{sT0}, s{sDJ}, 6\ns_lshl_b32 s{sT1}, s{sW}, 3\ns_add_u32 s{sC}, s{sT0}, s{sT1}")
I(f"s_lshr_b32 s{sT0}, s{sTI}, 3\ns_lshl_b32 s{sT0}, s{sT0}, 9\ns_add_u32 s{sT0}, s{sT0}, s{sC}\ns_lshl_b32 s{sT0}, s{sT0}, 4\ns_add_u32 s{sT0}, s{sT0}, {WS_SF}\nv_lshl_add_u32 v10, v8, 4, s{sT0}")
spoll2 = f"buffer_load_dword v11, v10, {sr(SWS,4)}, 0 offen sc1"
def mm(k):
    a.wait(vm=("h", k))
    hb = vH + (k % NRING) * 16
    if k == 6:
        for pr in range(2):
            e, o = hb + 8 * pr, hb + 8 * pr + 4
            I(f"v_swap_b32 v{e+2}, v{o}\nv_swap_b32 v{e+3}, v{o+1}")
    for dt in range(4):
        for tt in range(4):
            acc = vr(vAC2 + (dt*4+tt)*4, 4)
            I(f"v_mfma_f32_16x16x32_bf16 {acc}, {ar((k*4+dt)*4,4)}, {vr(hb+4*tt,4)}, {acc if k else 0}")
    if k + NRING < 7: hld(k + NRING)
for k in range(4): mm(k)
a.wait(vm="sst")
I(f"v_mov_b32 v12, 0\nv_mov_b32 v13, s{sNON}\ns_mov_b64 exec, 1\nbuffer_store_dword v13, v12, {sr(SWS,4)}, s{sE_} offen sc1\ns_mov_b64 exec, -1", vm="sf")
a.stamp()
I(f"v_and_b32 v12, 15, v{vL}\nv_lshrrev_b32 v13, 4, v{vL}\nv_lshlrev_b32 v14, 10, v12\nv_lshl_add_u32 v14, v13, 4, v14")
I(f"s_lshl_b32 s{sF}, s{sTI}, 16\ns_lshr_b32 s{sT0}, s{sW}, 1\ns_lshl_b32 s{sT1}, s{sT0}, 14\ns_add_u32 s{sF}, s{sF}, s{sT1}\ns_lshl_b32 s{sT1}, s{sDJ}, 7\ns_add_u32 s{sF}, s{sF}, s{sT1}\ns_and_b32 s{sT1}, s{sW}, 1\ns_lshl_b32 s{sT1}, s{sT1}, 6\ns_add_u32 s{sF}, s{sF}, s{sT1}")
I(f"buffer_load_dwordx4 v[4:7], v14, {sr(SX,4)}, s{sF} offen", vm="x")
mm(4); mm(5)
I(spoll2, vm="spoll")
mm(6)
a.stamp()
I("s_barrier")
I(f"s_lshl_b32 s{sT0}, s{sW}, 14\ns_add_u32 s{sT0}, s{sT0}, {SLOT}\nv_add_u32 v15, s{sT0}, v{vL16}")
for i in range(16): I(f"ds_write_b128 v15, {vr(vAC2+4*i,4)} offset:{1024*i}")
poll_check(spoll2, [11], "spoll")
I(f"v_lshlrev_b32 v10, 12, v8\nv_lshl_add_u32 v10, v9, 4, v10\ns_lshl_b32 s{sT0}, s{sC}, 12\ns_lshl_b32 s{sT1}, s{sTI}, 7\ns_add_u32 s{sT0}, s{sT0}, s{sT1}\ns_add_u32 s{sT0}, s{sT0}, {WS_S}")
I(f"buffer_load_dwordx4 v[80:83], v10, {sr(SWS,4)}, s{sT0} offen sc1", vm="s")
I(f"v_mul_u32_u24 v10, {SP}, v8\nv_lshl_add_u32 v10, v9, 4, v10\ns_mul_i32 s{sT0}, s{sW}, {8*SP}\nv_add_u32 v10, s{sT0}, v10")
I(f"v_lshrrev_b32 v84, 1, v13\nv_and_b32 v85, 1, v13\nv_lshlrev_b32 v84, 12, v84\nv_lshl_add_u32 v84, v85, 9, v84\nv_lshl_add_u32 v84, v12, 4, v84")
I(f"s_lshr_b32 s{sT0}, s{sW}, 1\ns_lshl_b32 s{sT0}, s{sT0}, 10\ns_and_b32 s{sT1}, s{sW}, 1\ns_lshl_b32 s{sT1}, s{sT1}, 13\ns_add_u32 s{sT0}, s{sT0}, s{sT1}\ns_add_u32 s{sT0}, s{sT0}, {SLOT}\nv_add_u32 v84, s{sT0}, v84\nv_add_u32 v85, 65536, v84")
I(f"v_bfe_u32 v86, v{vL}, 2, 2\nv_lshl_add_u32 v86, v13, 3, v86\nv_mul_u32_u24 v86, {SP}, v86\nv_and_b32 v87, 3, v{vL}\nv_lshl_add_u32 v86, v87, 3, v86")
I(f"s_lshr_b32 s{sT0}, s{sW}, 1\ns_lshl_b32 s{sT0}, s{sT0}, 5\ns_and_b32 s{sT1}, s{sW}, 1\ns_mul_i32 s{sT1}, s{sT1}, {32*SP}\ns_add_u32 s{sT0}, s{sT0}, s{sT1}\nv_add_u32 v86, s{sT0}, v86")
a.wait(vm="s")
I(f"ds_write_b128 v10, v[80:83] offset:{L_S}")
a.wait(lg="all"); I("s_barrier")
a.stamp()
b = 16
for p in range(8):
    for e in range(2): I(f"ds_read_b128 {vr(b+8*p+4*e,4)}, v{84 + (p>>2)} offset:{(p&3)*16384 + e*256}", lg=("r", p))
for hh in range(2): I(f"ds_read_b64_tr_b16 {vr(88+2*hh,2)}, v86 offset:{L_S + 4*hh*SP}", lg="sr")
for p in range(1, 8):
    a.wait(lg=("r", p))
    for i in range(4): I(f"v_pk_add_f32 {vr(b+2*i,2)}, {vr(b+2*i,2)}, {vr(b+8*p+2*i,2)}")
for i in range(8): I(f"v_mul_f32 v{b+8+i}, {LOG2E | 0x80000000:#x}, v{b+i}")
for i in range(8): I(f"v_exp_f32 v{b+8+i}, v{b+8+i}")
for i in range(8): I(f"v_add_f32 v{b+8+i}, 1.0, v{b+8+i}")
for i in range(8): I(f"v_rcp_f32 v{b+8+i}, v{b+8+i}")
for i in range(8): I(f"v_mul_f32 v{b+i}, v{b+i}, v{b+8+i}")
a.wait(lg="all", vm="x")
for i in range(4):
    I(f"v_lshlrev_b32 v{b+16}, 16, v{4+i}\nv_and_b32 v{b+17}, 0xffff0000, v{4+i}\nv_lshlrev_b32 v{b+18}, 16, v{88+i}\nv_and_b32 v{b+19}, 0xffff0000, v{88+i}")
    I(f"v_fma_f32 v{b+16}, v{b+18}, v{b+2*i}, v{b+16}\nv_fma_f32 v{b+17}, v{b+19}, v{b+2*i+1}, v{b+17}")
    I(f"v_cvt_pk_bf16_f32 v{b+24+i}, v{b+16}, v{b+17}")
I(f"buffer_store_dwordx4 {vr(b+24,4)}, v14, {sr(SO,4)}, s{sF} offen")
a.stamps_out(0, 28)
a.label("Lend")
I("s_endpgm")
a.raw(f'.section .rodata,"a"\n.p2align 6\n.amdhsa_kernel {KN}\n  .amdhsa_next_free_vgpr 256\n  .amdhsa_next_free_sgpr 102\n'
      f'  .amdhsa_accum_offset 144\n  .amdhsa_group_segment_fixed_size 0\n  .amdhsa_kernarg_size 104\n  .amdhsa_user_sgpr_count 2\n'
      f'  .amdhsa_user_sgpr_kernarg_segment_ptr 1\n  .amdhsa_system_sgpr_workgroup_id_x 1\n.end_amdhsa_kernel')
head = f"; @launch grid=(256,1,1) block=(512,1,1) lds={5*SLOT}\n"
out = sys.argv[1] if len(sys.argv) > 1 else f"cdna_kernels/{NAME}.s"
open(out, "w").write(head + a.text())
print("written", out, "nops", a.nnop, "lines", len(a.lines))
```
